```python
import torch

def _softmax(x, axis=-1):
    return torch.softmax(x, dim=axis)
def _gelu(x):
    return torch.nn.functional.gelu(x, approximate="tanh")
def _silu(x):
    return torch.nn.functional.silu(x)
def _sigmoid(x):
    return torch.sigmoid(x)
def _layernorm(x, axis=-1, eps=1e-5):
    m = x.mean(dim=axis, keepdim=True)
    v = x.var(dim=axis, keepdim=True, unbiased=False)
    return (x - m) / torch.sqrt(v + eps)
def _scatter_add(tgt, idx, src, axis=0):
    return tgt.clone().index_add_(axis, idx, src)
def _segment_sum(src, seg, n):
    out = torch.zeros((n,) + src.shape[1:], dtype=src.dtype)
    return out.index_add_(0, seg, src)
def _pad(x, pw):
    flat = tuple(v for pair in reversed(pw) for v in pair)
    return torch.nn.functional.pad(x, flat)

kernel_name = 'sequential_preLN__spectral_gfnet__moe_arch_mod__prompt'

def setup_inputs():

    _w = (lambda a: (lambda t: t.to(torch.bfloat16) if t.is_floating_point() else t)(torch.as_tensor(a)))
    def _A_setup():
        B, S, D = 1, 2048, 1024
        Df = D // 2 + 1
        return {
            "x": _w((lambda *s: torch.randn(*s, dtype=torch.bfloat16) * 0.05)(B, S, D)),
            "w_r": _w((lambda *s: torch.randn(*s, dtype=torch.bfloat16) * 1.6)(S, Df) * 0.02),
            "w_i": _w((lambda *s: torch.randn(*s, dtype=torch.bfloat16) * 1.6)(S, Df) * 0.02),
        }
    _A_in = _A_setup()

    def _B_setup():
        B, S, D, F, C = 1, 2048, 1024, 3584, 8
        return {
            "x": _w((lambda *s: torch.randn(*s, dtype=torch.bfloat16) * 0.05)(B, S, D)),
            "w_r": _w((lambda *s: torch.randn(*s, dtype=torch.bfloat16) * 0.2)(D)),
            "w_gate": _w((lambda *s: torch.randn(*s, dtype=torch.bfloat16) * 0.2)(D, F)),
            "w_up": _w((lambda *s: torch.randn(*s, dtype=torch.bfloat16) * 0.2)(D, F)),
            "w_down": _w((lambda *s: torch.randn(*s, dtype=torch.bfloat16) * 0.2)(F, D)),
        }
    _B_in = _B_setup()

    return {
        "A_x": _A_in["x"],
        "A_w_r": _A_in["w_r"],
        "A_w_i": _A_in["w_i"],
        "B_x": _B_in["x"],
        "B_w_r": _B_in["w_r"],
        "B_w_gate": _B_in["w_gate"],
        "B_w_up": _B_in["w_up"],
        "B_w_down": _B_in["w_down"],
    }

def reference(A_x, A_w_r, A_w_i, B_x, B_w_r, B_w_gate, B_w_up, B_w_down):
    def _A_ref(x, w_r, w_i):
        B, S, D = x.shape
        X = (lambda x, axes=(-2,-1): torch.fft.rfft2(x.float(), dim=axes))(x, axes=(-2, -1))
        W = w_r + 1j * w_i
        X = X * W
        y = (lambda x, s, axes=(-2,-1): torch.fft.irfft2(x, s=s, dim=axes).to(torch.bfloat16))(X, (S, D), axes=(-2, -1))
        return y

    def _B_ref(x, w_r, w_gate, w_up, w_down):
        B, S, D = x.shape
        C = 8
        r = x @ w_r
        idx = torch.argsort(-r, axis=-1)[:, :C]
        idx_e = (lambda x, n, axis: torch.repeat_interleave(x, n, dim=axis))(idx.reshape(B, C, 1), D, axis=2)
        x_sel = (lambda x, i, axis: torch.take_along_dim(x, i, dim=axis))(x, idx_e, axis=1)
        g = _silu(x_sel @ w_gate)
        u = x_sel @ w_up
        y = (g * u) @ w_down
        r_sel = _sigmoid((lambda x, i, axis: torch.take_along_dim(x, i, dim=axis))(r, idx, axis=1))
        y = y * r_sel.reshape(B, C, 1)
        b_off = (torch.arange(B) * S).reshape(B, 1)
        flat_idx = (idx + b_off).reshape(B * C)
        zero = (x * 0.0).reshape(B * S, D)
        upd = _scatter_add(zero, flat_idx, y.reshape(B * C, D), axis=0)
        return x + upd.reshape(B, S, D)

    x = A_x
    h = x + _A_ref(_layernorm(x, axis=-1), A_w_r, A_w_i)
    h2 = h + _B_ref(_layernorm(h, axis=-1), B_w_r, B_w_gate, B_w_up, B_w_down)
    return h2
```

```python
import re

TRANS = ('v_exp_f32','v_log_f32','v_rcp_f32','v_rsq_f32','v_sqrt_f32','v_sin_f32','v_cos_f32','v_rcp_iflag_f32')

def regset(tok):
    tok = tok.strip()
    tok = tok.lstrip('-')
    if tok.startswith('abs(') or tok.startswith('|'):
        tok = tok.replace('abs(','').replace(')','').replace('|','')
    m = re.fullmatch(r'([vsa])(\d+)', tok)
    if m: return {(m.group(1), int(m.group(2)))}
    m = re.fullmatch(r'([vsa])\[(\d+):(\d+)\]', tok)
    if m: return {(m.group(1), i) for i in range(int(m.group(2)), int(m.group(3))+1)}
    if tok == 'vcc': return {('s',106),('s',107)}
    if tok == 'vcc_lo': return {('s',106)}
    if tok == 'vcc_hi': return {('s',107)}
    if tok == 'exec': return {('s',126),('s',127)}
    if tok == 'm0': return {('s',124)}
    return set()

def split_ops(s):
    out=[];depth=0;cur=''
    for ch in s:
        if ch in '[(': depth+=1
        if ch in '])': depth-=1
        if ch==',' and depth==0:
            out.append(cur.strip());cur=''
        else: cur+=ch
    if cur.strip(): out.append(cur.strip())
    return out

class I:
    def __init__(self, text):
        self.text = text
        t = text.split(';')[0].strip()
        self.label = t.endswith(':')
        self.mn = t.split()[0] if t else ''
        rest = t[len(self.mn):].strip()
        ops = split_ops(rest)
        self.mods = ''
        if ops:
            parts = ops[-1].split(None,1)
            ops[-1] = parts[0]
            if len(parts)>1: self.mods = parts[1]
        self.ops = ops
        mn = self.mn
        self.mfma = mn.startswith('v_mfma')
        self.valu = mn.startswith('v_') and not self.mfma
        base = mn.replace('_e32','').replace('_e64','').replace('_dpp','').replace('_sdwa','')
        self.base = base
        self.trans = base in TRANS
        self.dlop = base.startswith('v_dot')
        self.dpp = mn.endswith('_dpp') or 'quad_perm' in self.mods or 'row_' in self.mods
        self.vmem = mn.startswith('buffer_') or mn.startswith('global_')
        self.ds = mn.startswith('ds_')
        self.salu = mn.startswith('s_') and not mn.startswith('s_load')
        self.defs=set(); self.uses=set(); self.srcc=set(); self.srcab=set()
        R = [regset(o) for o in ops]
        U = lambda l: set().union(*l) if l else set()
        if self.label or not mn: return
        if self.mfma:
            self.defs=R[0]; self.srcab=R[1]|R[2]; self.srcc=R[3]; self.uses=self.srcab|self.srcc
            self.passes = 8 if '32x32' in mn else 4
        elif self.valu:
            if base in ('v_swap_b32','v_permlane32_swap_b32','v_permlane16_swap_b32'):
                self.defs=R[0]|R[1]; self.uses=R[0]|R[1]
            elif base in ('v_add_co_u32','v_sub_co_u32','v_addc_co_u32','v_subb_co_u32','v_subrev_co_u32','v_mad_u64_u32'):
                self.defs=R[0]|R[1]; self.uses=U(R[2:])
            else:
                self.defs=R[0]; self.uses=U(R[1:])
                if base in ('v_fmac_f32','v_dot2c_f32_bf16','v_fma_mixlo_f16','v_fma_mixhi_f16','v_writelane_b32') or self.dpp:
                    self.uses |= R[0]
                if base.startswith('v_cmpx'): self.defs |= regset('exec')
        elif self.vmem:
            if '_load' in mn and 'lds' not in self.mods.split():
                self.defs=R[0]; self.uses=U(R[1:])
            elif 'atomic' in mn and 'sc0' in self.mods.split():
                self.defs=R[0]; self.uses=U(R)
            else:
                self.uses=U(R)
        elif self.ds:
            if 'read' in mn or 'permute' in mn or 'swizzle' in mn or 'rtn' in mn:
                self.defs=R[0]; self.uses=U(R[1:])
            else: self.uses=U(R)
        elif mn.startswith('s_'):
            if mn.startswith('s_cmp') or mn.startswith('s_cbranch') or mn in ('s_waitcnt','s_barrier','s_nop','s_endpgm','s_branch','s_sleep','s_setprio'):
                self.uses=U(R)
            else:
                self.defs=R[0] if R else set(); self.uses=U(R[1:])
                if 'saveexec' in mn: self.defs |= regset('exec')
        self.widestore = self.vmem and 'store' in mn and ('x3' in mn or 'x4' in mn)
        self.dstsel = self.valu and (base in ('v_fma_mixlo_f16','v_fma_mixhi_f16') or ('dst_sel' in self.mods and 'dst_sel:DWORD' not in self.mods))
    def states(self):
        if self.label or not self.mn: return 0
        if self.mn=='s_nop': return int(self.ops[0],0)+1
        return 1

def V(s): return {r for r in s if r[0] in 'va'}
def S(s): return {r for r in s if r[0]=='s'}

def need(p, c):
    n=0
    if p.valu:
        pv=V(p.defs); ps=S(p.defs)
        if c.mfma and pv & c.uses: n=max(n, 3 if p.dlop else 2)
        if c.valu:
            if p.trans and not c.trans and pv & c.uses: n=max(n,1)
            if p.trans and c.trans and pv & c.uses: n=max(n,1)
            if c.dpp and pv & c.uses: n=max(n,2)
            if c.base.startswith('v_permlane') and pv & c.uses: n=max(n,2)
            if c.base in ('v_readlane_b32','v_readfirstlane_b32') and pv & c.uses: n=max(n,1)
            if ps & c.uses:
                n=max(n,2)
                if c.base in ('v_readlane_b32','v_writelane_b32') and ps & regset(c.ops[2]): n=max(n,4)
            if c.base=='v_cndmask_b32' and len(c.ops)==3 and ps & regset('vcc'): n=max(n,2)
            if p.dstsel and pv & (c.uses|c.defs): n=max(n,1)
            if p.dlop and pv & (c.uses|c.defs):
                if c.base==p.base and not (pv & set().union(*[regset(o) for o in c.ops[1:3]])): pass
                else: n=max(n,3)
            if regset('exec') & ps:
                if c.dpp: n=max(n,5)
                if c.base in ('v_readlane_b32','v_readfirstlane_b32','v_writelane_b32') or c.base.startswith('v_permlane'): n=max(n,4)
        if c.mfma and regset('exec') & ps: n=max(n,4)
        if (c.vmem) and ps & c.uses: n=max(n,5)
        if (c.vmem or c.ds) and p.dlop and pv & c.uses: n=max(n,3)
        if c.salu and ps & c.uses: n=max(n,1)
    if p.mfma:
        ps_=p.passes
        if c.mfma:
            if p.defs & c.srcab: n=max(n,ps_+4)
            if p.defs & c.srcc:
                if p.defs==c.srcc and c.passes==ps_: pass
                else: n=max(n,ps_+2)
            elif p.defs & c.defs and c.passes!=ps_: n=max(n,ps_+2)
        elif c.valu:
            if p.defs & (c.uses|c.defs): n=max(n,ps_+4)
            if p.srcc & c.defs: n=max(n,ps_-1)
        elif c.vmem or c.ds:
            if p.defs & (c.uses|c.defs): n=max(n,ps_+4)
            if p.srcc & c.defs: n=max(n,ps_-1)
    if p.vmem and p.widestore:
        data=regset(p.ops[0]) if p.mn.startswith('buffer') else regset(p.ops[1])
        if c.valu and data & c.defs: n=max(n,2)
        elif data & c.defs: n=max(n,1)
    if p.salu and ('s',124) in p.defs:
        if (c.vmem and 'lds' in c.mods.split()) or 'addtid' in c.mn or c.mn.startswith('s_movrel'): n=max(n,1)
    return n

def fix_hazards(lines):
    out=[]
    nn=0
    for t in lines:
        c=I(t)
        if not c.label and c.mn and not c.mn.startswith('.'):
            dist=0; req=0
            for p in reversed(out):
                if dist>=20: break
                if p.label or not p.mn or p.mn.startswith('.'): continue
                k=need(p,c)
                if k-dist>req: req=k-dist
                dist+=p.states()
            while req>0:
                k=min(req,16)
                out.append(I(f's_nop {k-1}')); req-=k; nn+=k
        out.append(c)
    return [i.text for i in out], nn

class K:
    def __init__(self, name, grid, block, lds):
        self.name=name; self.grid=grid; self.block=block; self.lds=lds
        self.L=[]; self.nv=1; self.ns=3; self.maxv=1
    def e(self, s):
        for ln in s.strip().split('\n'):
            ln=ln.strip()
            if ln: self.L.append(ln)
    def v(self, n=1, align=None):
        if align is None: align = 2 if n>1 else 1
        b=(self.nv+align-1)//align*align
        self.nv=b+n; self.maxv=max(self.maxv,self.nv)
        return b
    def s(self, n=1, align=None):
        if align is None: align = 4 if n>=4 else (2 if n>1 else 1)
        b=(self.ns+align-1)//align*align
        self.ns=b+n
        assert self.ns<=100
        return b
    def text(self):
        body,nn=fix_hazards(self.L)
        self.nnops=nn
        nv=max(self.maxv,8)
        acc=(nv+3)//4*4
        t=f".text\n.globl {self.name}\n.p2align 8\n.type {self.name},@function\n{self.name}:\n"
        t+=''.join(('' if l.endswith(':') else '    ')+l+'\n' for l in body)
        d=f""".amdhsa_kernel {self.name}
  .amdhsa_next_free_vgpr {nv}
  .amdhsa_next_free_sgpr {max(self.ns,8)}
  .amdhsa_accum_offset {acc}
  .amdhsa_group_segment_fixed_size 0
  .amdhsa_kernarg_size 88
  .amdhsa_user_sgpr_count 2
  .amdhsa_user_sgpr_kernarg_segment_ptr 1
  .amdhsa_system_sgpr_workgroup_id_x 1
  .amdhsa_float_denorm_mode_32 3
.end_amdhsa_kernel
"""
        return t,d

def vr(b,n): return f'v[{b}:{b+n-1}]' if n>1 else f'v{b}'
def sr(b,n): return f's[{b}:{b+n-1}]' if n>1 else f's{b}'

def build(kernels, launches=None, header=''):
    launches = launches or kernels
    out=header
    for k in launches:
        out+=f"; @launch kernel={k.name} grid=({k.grid},1,1) block=({k.block},1,1) lds={k.lds}\n"
    out+='.amdgcn_target "amdgcn-amd-amdhsa--gfx950"\n'
    ds=[]
    for k in kernels:
        t,d=k.text(); out+=t; ds.append(d)
    out+='.text\n.p2align 8\n.fill 256, 4, 0xBF800000\n'
    out+='.section .rodata,"a"\n'
    for d in ds: out+='.p2align 6\n'+d
    return out
```

```python
import sys, struct
from asmlib import *

def fhex(x): return '0x%08x' % struct.unpack('<I', struct.pack('<f', x))[0]

WS_X1=0
WS_Z=0x500000
ZP=8*528*4
WS_KEYS=0xA00000
WS_STATS=0xA02000
WS_SEL=0xA06000
WS_ACT=0xA08000
WS_PART=0xA20000
WS_BYTES=0x1000000
A_X,A_WR,A_WI,A_BX,A_BWR,A_WG,A_WU,A_WD,A_OUT,A_DBG,A_WS=[8*i for i in range(11)]

def srd(k, argoff, nbytes):
    s=k.s(4)
    k.e(f's_load_dwordx2 {sr(s,2)}, s[0:1], {argoff}')
    k.e(f's_mov_b32 s{s+2}, {nbytes}')
    k.e(f's_mov_b32 s{s+3}, 0x00020000')
    return s

def reduce_sum(k, regs):
    for ctl in ('quad_perm:[1,0,3,2] row_mask:0xf bank_mask:0xf','quad_perm:[2,3,0,1] row_mask:0xf bank_mask:0xf',
                'row_half_mirror row_mask:0xf bank_mask:0xf','row_mirror row_mask:0xf bank_mask:0xf',
                'row_bcast:15 row_mask:0xa bank_mask:0xf','row_bcast:31 row_mask:0xc bank_mask:0xf'):
        for r in regs:
            k.e(f'v_add_f32_dpp v{r}, v{r}, v{r} {ctl}')

def round_bf16(k, r):
    k.e(f'v_cvt_pk_bf16_f32 v{r}, v{r}, v{r}')
    k.e(f'v_and_b32 v{r}, 0xffff0000, v{r}')

def s0_from_wg(k):
    s0=k.s(); t=k.s()
    k.e(f'''s_and_b32 s{s0}, s2, 0xfffffff0
    s_and_b32 s{t}, s2, 7
    s_lshl_b32 s{t}, s{t}, 1
    s_or_b32 s{s0}, s{s0}, s{t}
    s_bfe_u32 s{t}, s2, 0x10003
    s_or_b32 s{s0}, s{s0}, s{t}''')
    return s0

def k1():
    RP=528
    k=K('fft_rows_fwd_kernel',256,512,8*RP*4)
    e=k.e
    e('s_cmp_ge_u32 s2, 256'); e('s_cbranch_scc1 K1_END')
    sx=srd(k,A_X,4194304); sw=srd(k,A_WS,WS_BYTES)
    s0=s0_from_wg(k)
    n=k.v(); g=k.v(); w=k.v(); voff=k.v(); t0=k.v(); t1=k.v()
    ssoff=k.s()
    e(f'''v_and_b32 v{n}, 15, v0
    v_bfe_u32 v{g}, v0, 4, 2
    v_lshrrev_b32 v{w}, 6, v0
    v_lshlrev_b32 v{voff}, 19, v{w}
    v_lshl_or_b32 v{voff}, v{n}, 6, v{voff}
    v_lshl_or_b32 v{voff}, v{g}, 4, v{voff}
    s_lshl_b32 s{ssoff}, s{s0}, 11
    s_waitcnt lgkmcnt(0)''')
    X=k.v(8)
    e(f'buffer_load_dwordx4 {vr(X,4)}, v{voff}, {sr(sx,4)}, s{ssoff} offen')
    e(f'buffer_load_dwordx4 {vr(X+4,4)}, v{voff}, {sr(sx,4)}, s{ssoff} offen offset:1024')
    sw_=k.s()
    e(f'v_readfirstlane_b32 s{sw_}, v{w}')
    Iu=k.v(8); ee=k.v(); val=k.v()
    e(f'''v_lshrrev_b32 v{ee}, 1, v{n}
    v_lshlrev_b32 v{t0}, 2, v{g}
    v_sub_u32 v{ee}, v{ee}, v{t0}
    v_and_b32 v{t1}, 1, v{n}
    v_lshlrev_b32 v{val}, 4, v{t1}
    v_mov_b32 v{Iu}, 0x3f80
    v_lshlrev_b32 v{val}, v{val}, v{Iu}''')
    sm=[k.s(2) for _ in range(4)]
    for u in range(2):
        for q in range(4): e(f'v_cmp_eq_u32 {sr(sm[q],2)}, {q-8*u}, v{ee}')
        for q in range(4): e(f'v_cndmask_b32 v{Iu+4*u+q}, 0, v{val}, {sr(sm[q],2)}')
    fn=k.v(); fg=k.v(); sgn=k.v()
    e(f'''v_cvt_f32_u32 v{fn}, v{n}
    v_cvt_f32_u32 v{fg}, v{t0}
    v_mul_f32 v{fn}, {fhex(1/32)}, v{fn}
    v_mul_u32_u24 v{sgn}, 0x8000, v{t1}
    v_lshl_or_b32 v{sgn}, v{sgn}, 16, v{sgn}''')
    fb=k.v(8)
    for u in range(2):
        for r in range(4): e(f'v_add_f32 v{fb+4*u+r}, {fhex(16*u+r)}, v{fg}')
    FC0=k.v(4);FSn0=k.v(4);FSp0=k.v(4);FC1=k.v(4);FSn1=k.v(4)
    T=k.v(32)
    for r in range(4): e(f'v_mul_f32 v{T+r}, v{fn}, v{fb+r}')
    for r in range(4):
        e(f'v_cos_f32 v{T+4+r}, v{T+r}'); e(f'v_sin_f32 v{T+8+r}, v{T+r}')
    for q in range(2):
        e(f'v_cvt_pk_f16_f32 v{FC0+q}, v{T+4+2*q}, v{T+5+2*q}')
        e(f'v_cvt_pk_f16_f32 v{FSp0+q}, v{T+8+2*q}, v{T+9+2*q}')
    for q in range(2):
        e(f'v_xor_b32 v{FC0+2+q}, v{FC0+q}, v{sgn}')
        e(f'v_xor_b32 v{FSp0+2+q}, v{FSp0+q}, v{sgn}')
    for q in range(4):
        e(f'v_xor_b32 v{FSn0+q}, 0x80008000, v{FSp0+q}')
        e(f'v_xor_b32 v{FC1+q}, 0x80000000, v{FC0+q}')
        e(f'v_xor_b32 v{FSn1+q}, 0x00008000, v{FSp0+q}')
    TC=k.v(16); TS=k.v(16); fa=k.v(2)
    e(f'v_mul_f32 v{fa}, {fhex(1/32)}, v{fn}')
    e(f'v_add_f32 v{fa+1}, {fhex(16/1024)}, v{fa}')
    ti=lambda u,v,r: (u*2+v)*4+r
    for u in range(2):
        for v in range(2):
            for r in range(4): e(f'v_mul_f32 v{T+ti(u,v,r)}, v{fa+v}, v{fb+4*u+r}')
    for i in range(16):
        e(f'v_cos_f32 v{TC+i}, v{T+i}'); e(f'v_sin_f32 v{TS+i}, v{T+i}')
    R8=k.v(2)
    e(f'''v_lshrrev_b32 v{T}, 1, v{n}
    v_mul_u32_u24 v{T+1}, v{T}, v{g}
    v_lshl_add_u32 v{T+1}, v{t1}, 1, v{T+1}
    v_lshl_add_u32 v{T+2}, v{T}, 2, v{T+1}
    v_cvt_f32_u32 v{T+1}, v{T+1}
    v_cvt_f32_u32 v{T+2}, v{T+2}
    v_mul_f32 v{T+1}, {fhex(1/8)}, v{T+1}
    v_mul_f32 v{T+2}, {fhex(1/8)}, v{T+2}
    v_cos_f32 v{T+3}, v{T+1}
    v_sin_f32 v{T+4}, v{T+1}
    v_cos_f32 v{T+5}, v{T+2}
    v_sin_f32 v{T+6}, v{T+2}
    v_cvt_pk_f16_f32 v{R8}, v{T+3}, v{T+4}
    v_cvt_pk_f16_f32 v{R8+1}, v{T+5}, v{T+6}''')
    half0=k.v()
    e(f'''v_and_b32 v{T}, 63, v0
    v_cmp_eq_u32 vcc, 0, v{T}
    v_mov_b32 v{half0}, 1.0
    v_mov_b32 v{T+1}, 0.5
    v_cndmask_b32 v{half0}, v{half0}, v{T+1}, vcc''')
    wa=k.v(); ra=k.v(4); so=k.v()
    e(f'''v_lshrrev_b32 v{T}, 2, v{n}
    v_and_b32 v{T+1}, 2, v{n}
    v_xor_b32 v{T}, v{T}, v{T+1}
    v_lshlrev_b32 v{T}, 4, v{T}
    v_and_b32 v{T+1}, 3, v{n}
    v_lshl_or_b32 v{T}, v{T+1}, 6, v{T}
    v_lshl_or_b32 v{T}, v{g}, 9, v{T}
    v_mul_u32_u24 v{wa}, {RP*4}, v{w}
    v_add_u32 v{wa}, v{wa}, v{T}''')
    e(f'''v_lshrrev_b32 v{T}, 2, v{n}
    v_lshlrev_b32 v{T}, 2, v{T}
    v_lshl_or_b32 v{T}, v{T+1}, 4, v{T}
    v_lshl_or_b32 v{T}, v{w}, 8, v{T}
    v_mul_u32_u24 v{T+2}, {RP*4}, v{g}
    v_add_u32 v{ra}, v{T}, v{T+2}
    v_add_u32 v{ra+1}, 64, v{ra}
    v_xor_b32 v{T}, 32, v{T}
    v_add_u32 v{T}, v{T}, v{T+2}
    v_add_u32 v{ra+2}, 128, v{T}
    v_add_u32 v{ra+3}, 192, v{T}''')
    nyra=k.v()
    e(f'v_add_u32 v{nyra}, 2048, v{T+2}')
    e(f'''v_and_b32 v{T}, 1, v{w}
    v_lshrrev_b32 v{T+3}, 1, v{w}
    v_lshl_add_u32 v{T}, v{T+3}, 3, v{T}
    v_lshrrev_b32 v{T+3}, 2, v{n}
    v_lshl_add_u32 v{T}, v{T+3}, 1, v{T}
    v_mul_u32_u24 v{T+3}, 66, v{g}
    v_add_u32 v{T}, v{T}, v{T+3}
    v_lshlrev_b32 v{so}, 14, v{T}
    v_lshl_or_b32 v{so}, v{T+1}, 4, v{so}''')
    nyso=k.v()
    e(f'''v_add_u32 v{T+3}, 32, v{T+3}
    v_lshlrev_b32 v{nyso}, 14, v{T+3}''')
    sst=k.s(2)
    e(f'''s_lshl_b32 s{sst}, s{s0}, 6
    s_add_u32 s{sst}, s{sst}, {WS_X1}
    s_add_u32 s{sst+1}, s{sst}, {33*16384}''')
    sones=k.s()
    e(f's_mov_b32 s{sones}, 0x3f803f80')
    Dx=k.v(16)
    a0=k.v(); a1=k.v(); dl=k.v()
    e('s_waitcnt vmcnt(1)')
    for u in range(2): e(f'v_mfma_f32_16x16x32_bf16 {vr(Dx+4*u,4)}, {vr(X,4)}, {vr(Iu+4*u,4)}, 0')
    e(f'v_dot2_f32_bf16 v{a0}, v{X}, s{sones}, 0')
    for q in range(1,4): e(f'v_dot2_f32_bf16 v{a0}, v{X+q}, s{sones}, v{a0}')
    e('s_waitcnt vmcnt(0)')
    for u in range(2): e(f'v_mfma_f32_16x16x32_bf16 {vr(Dx+8+4*u,4)}, {vr(X+4,4)}, {vr(Iu+4*u,4)}, 0')
    for q in range(4,8): e(f'v_dot2_f32_bf16 v{a0}, v{X+q}, s{sones}, v{a0}')
    reduce_sum(k,[a0])
    smb=k.s(); srs=k.s()
    e(f'v_mul_f32 v{a0}, {fhex(1/1024)}, v{a0}')
    e(f'v_cvt_pk_bf16_f32 v{a1}, v{a0}, v{a0}')
    e(f'v_and_b32 v{a1}, 0xffff0000, v{a1}')
    e(f'v_sub_f32 v{dl}, v{a0}, v{a1}')
    e(f'v_readlane_b32 s{smb}, v{a1}, 63')
    for i in range(16): e(f'v_subrev_f32 v{Dx+i}, s{smb}, v{Dx+i}')
    e(f'v_mul_f32 v{a0}, v{Dx}, v{Dx}'); e(f'v_mul_f32 v{a1}, v{Dx+1}, v{Dx+1}')
    for i in range(2,16): e(f'v_fmac_f32 v{a0 if i%2==0 else a1}, v{Dx+i}, v{Dx+i}')
    e(f'v_add_f32 v{a0}, v{a0}, v{a1}')
    reduce_sum(k,[a0])
    e(f'v_mul_f32 v{a0}, {fhex(1/1024)}, v{a0}')
    e(f'v_fma_f32 v{a0}, -v{dl}, v{dl}, v{a0}')
    round_bf16(k,a0)
    e(f'v_add_f32 v{a0}, {fhex(1e-5)}, v{a0}')
    round_bf16(k,a0)
    e(f'v_sqrt_f32 v{a0}, v{a0}')
    round_bf16(k,a0)
    e(f'v_rcp_f32 v{a0}, v{a0}')
    e(f'v_readlane_b32 s{srs}, v{a0}, 63')
    opX=X
    for hi in range(2):
        for u in range(2):
            for t in range(2):
                for q in range(2):
                    e(f'v_fma_mix{"hi" if hi else "lo"}_f16 v{opX+4*u+2*t+q}, v{Dx+8*t+4*u+2*q+hi}, s{srs}, 0')
    Ti=lambda u,v,c: T+((u*2+v)*2+c)*4
    F=[[FC0,FSn0],[FC1,FSn1]]
    for v in range(2):
        for u in range(2):
            for c in range(2):
                e(f'v_mfma_f32_16x16x32_f16 {vr(Ti(u,v,c),4)}, {vr(opX+4*u,4)}, {vr(F[v][c],4)}, 0')
    opT=lambda v,c: Dx+(v*2+c)*4
    tmp=k.v(8)
    Vv=k.v(16); VN=k.v(4)
    Vi=lambda v,c: Vv+(v*2+c)*4
    for v in range(2):
        for u in range(2):
            for r in range(4):
                e(f'v_mul_f32 v{tmp+r}, v{Ti(u,v,0)+r}, v{TC+ti(u,v,r)}')
                e(f'v_mul_f32 v{tmp+4+r}, v{Ti(u,v,1)+r}, v{TC+ti(u,v,r)}')
            for r in (0,2,1,3):
                hl='hi' if r&1 else 'lo'
                e(f'v_fma_mix{hl}_f16 v{opT(v,0)+2*u+(r>>1)}, v{Ti(u,v,1)+r}, v{TS+ti(u,v,r)}, v{tmp+r}')
                e(f'v_fma_mix{hl}_f16 v{opT(v,1)+2*u+(r>>1)}, -v{Ti(u,v,0)+r}, v{TS+ti(u,v,r)}, v{tmp+4+r}')
        e(f'v_mfma_f32_16x16x32_f16 {vr(Vi(v,0),4)}, {vr(FC0,4)}, {vr(opT(v,0),4)}, 0')
        e(f'v_mfma_f32_16x16x32_f16 {vr(Vi(v,1),4)}, {vr(FC0,4)}, {vr(opT(v,1),4)}, 0')
        e(f'v_mfma_f32_16x16x32_f16 {vr(Vi(v,0),4)}, {vr(FSp0,4)}, {vr(opT(v,1),4)}, {vr(Vi(v,0),4)}')
        e(f'v_mfma_f32_16x16x32_f16 {vr(Vi(v,1),4)}, {vr(FSn0,4)}, {vr(opT(v,0),4)}, {vr(Vi(v,1),4)}')
        if v==0: e(f'v_mfma_f32_16x16x32_f16 {vr(VN,4)}, {vr(FC1,4)}, {vr(opT(0,0),4)}, 0')
    P=T
    e(f'v_mul_f32 v{Vi(0,0)}, v{Vi(0,0)}, v{half0}')
    e(f'v_mul_f32 v{VN}, 0.5, v{VN}')
    for r in range(4): e(f'v_cvt_pk_f16_f32 v{P+r}, v{Vi(0,0)+r}, v{Vi(0,1)+r}')
    e(f'v_cvt_pk_f16_f32 v{VN}, v{VN}, 0')
    e(f'ds_write_b128 v{wa}, {vr(P,4)}')
    e('s_mov_b64 exec, 1')
    e(f'ds_write_b32 v{wa}, v{VN} offset:2048')
    e('s_mov_b64 exec, -1')
    for r in range(4): e(f'v_cvt_pk_f16_f32 v{P+4+r}, v{Vi(1,0)+r}, v{Vi(1,1)+r}')
    e(f'ds_write_b128 v{wa}, {vr(P+4,4)} offset:256')
    e('s_waitcnt lgkmcnt(0)'); e('s_barrier')
    B=T+8; Dr=T+16; O=Dx
    for i in range(4): e(f'ds_read2st64_b32 {vr(B+2*i,2)}, v{ra+i} offset0:0 offset1:33')
    for i in range(4):
        e(f's_waitcnt lgkmcnt({3-i})')
        e(f'v_mfma_f32_16x16x16_f16 {vr(Dr+4*i,4)}, {vr(R8,2)}, {vr(B+2*i,2)}, 0')
    for u in range(2):
        for i in range(4): e(f'v_cvt_pk_f16_f32 v{O+4*u+i}, v{Dr+4*i+2*u}, v{Dr+4*i+2*u+1}')
        e(f'buffer_store_dwordx4 {vr(O+4*u,4)}, v{so}, {sr(sw,4)}, s{sst+u} offen')
    e(f's_cmp_lg_u32 s{sw_}, 0'); e('s_cbranch_scc1 K1_END')
    e(f'ds_read2st64_b32 {vr(B,2)}, v{nyra} offset0:0 offset1:33')
    for i in range(8): e(f'v_mov_b32 v{Vv+i}, 0')
    e('s_waitcnt lgkmcnt(0)')
    e(f'v_mfma_f32_16x16x16_f16 {vr(Dr,4)}, {vr(R8,2)}, {vr(B,2)}, 0')
    e('s_mov_b32 exec_lo, 0x00010001'); e('s_mov_b32 exec_hi, 0x00010001')
    for u in range(2):
        e(f'v_cvt_pk_f16_f32 v{Vv+4*u+3}, v{Dr+2*u}, v{Dr+2*u+1}')
        e(f'buffer_store_dwordx4 {vr(Vv+4*u,4)}, v{nyso}, {sr(sw,4)}, s{sst+u} offen')
    e('K1_END:'); e('s_endpgm')
    return k

def k2():
    k=K('fft_cols_kernel',264,256,0)
    e=k.e
    e('s_cmp_ge_u32 s2, 264'); e('s_cbranch_scc1 K2_END')
    sw=srd(k,A_WS,WS_BYTES); swr=srd(k,A_WR,2048*513*2); swi=srd(k,A_WI,2048*513*2)
    n=k.v(); g=k.v(); w=k.v(); voff=k.v(); woff=k.v(); t0=k.v(); t1=k.v()
    sj=k.s(); skb=k.s(); sw_=k.s(); sblk=k.s(); sk0=k.s(); swo=k.s(4,1); st=k.s()
    e(f'''v_lshrrev_b32 v{w}, 6, v0
    v_and_b32 v{n}, 15, v0
    v_readfirstlane_b32 s{sw_}, v{w}
    v_bfe_u32 v{g}, v0, 4, 2
    s_and_b32 s{sj}, s2, 7
    s_lshr_b32 s{skb}, s2, 3
    s_lshl_b32 s{sk0}, s{skb}, 4
    s_lshl_b32 s{st}, s{sw_}, 2
    s_add_u32 s{sk0}, s{sk0}, s{st}
    s_cmp_gt_u32 s{sk0}, 512
    s_cbranch_scc1 K2_END
    s_mul_i32 s{sblk}, s{sj}, 33
    s_add_u32 s{sblk}, s{sblk}, s{skb}
    s_lshl_b32 s{sblk}, s{sblk}, 14
    s_lshl_b32 s{st}, s{sw_}, 4
    s_add_u32 s{sblk}, s{sblk}, s{st}
    v_lshlrev_b32 v{voff}, 6, v{n}
    v_lshl_or_b32 v{voff}, v{g}, 12, v{voff}
    s_waitcnt lgkmcnt(0)''')
    L=k.v(16)
    for i in range(4): e(f'buffer_load_dwordx4 {vr(L+4*i,4)}, v{voff}, {sr(sw,4)}, s{sblk} offen offset:{1024*i}')
    e(f'''v_lshlrev_b32 v{t0}, 3, v{n}
    v_lshl_or_b32 v{t1}, v{g}, 9, v{t0}
    v_mul_u32_u24 v{woff}, 1026, v{t1}
    s_min_u32 s{st}, s{sk0}, 509
    s_mul_i32 s{swo}, s{sj}, 513
    s_add_u32 s{swo}, s{swo}, s{st}
    s_lshl_b32 s{swo}, s{swo}, 1''')
    for r in range(1,4): e(f's_add_u32 s{swo+r}, s{swo}, {r*128*1026}')
    WR=k.v(8); WI=k.v(8)
    for r in range(4):
        e(f'buffer_load_dwordx2 {vr(WR+2*r,2)}, v{woff}, {sr(swr,4)}, s{swo+r} offen')
        e(f'buffer_load_dwordx2 {vr(WI+2*r,2)}, v{woff}, {sr(swi,4)}, s{swo+r} offen')
    fq=k.v(4)
    fn=k.v(); fnj=k.v(); fqj=k.v(4); A=k.v(4); C=k.v(4); Sn=k.v(4)
    e(f'''v_lshlrev_b32 v{t1}, 2, v{g}
    v_cvt_f32_u32 v{fq}, v{t1}
    v_cvt_f32_u32 v{fn}, v{n}
    v_add_u32 v{t0}, s{sj}, v{t0}
    v_cvt_f32_u32 v{fnj}, v{t0}
    v_cvt_f32_u32 v{t0}, s{sj}''')
    for r in range(1,4): e(f'v_add_f32 v{fq+r}, {fhex(r)}, v{fq}')
    e(f's_mov_b32 s{st}, {fhex(8.0)}')
    for r in range(4): e(f'v_fma_f32 v{fqj+r}, v{fq+r}, s{st}, v{t0}')
    def sincos(fx, fy4, scale, Cd, Sd):
        e(f'v_mul_f32 v{t1}, {fhex(scale)}, v{fx}')
        for r in range(4): e(f'v_mul_f32 v{A+r}, v{t1}, v{fy4+r}')
        for r in range(4):
            e(f'v_cos_f32 v{Cd+r}, v{A+r}'); e(f'v_sin_f32 v{Sd+r}, v{A+r}')
    M1re=k.v(4);M1im=k.v(4);M2re=k.v(4);M2im=k.v(4);M3re=k.v(4);M3im=k.v(4);M4re=k.v(4);M4im=k.v(4)
    T1c=k.v(4);T1s=k.v(4);T3c=k.v(4);T3s=k.v(4)
    sincos(fnj,fq,1/128,C,Sn)
    for r in range(4):
        e(f'v_cvt_pk_f16_f32 v{M1re+r}, v{C+r}, v{Sn+r}'); e(f'v_cvt_pk_f16_f32 v{M1im+r}, -v{Sn+r}, v{C+r}')
    sincos(fnj,fq,1/2048,T1c,T1s)
    for r in range(4):
        e(f'v_mul_f32 v{T1c+r}, {fhex(1/16)}, v{T1c+r}'); e(f'v_mul_f32 v{T1s+r}, {fhex(1/16)}, v{T1s+r}')
    sincos(fn,fq,1/16,C,Sn)
    for r in range(4):
        e(f'v_cvt_pk_f16_f32 v{M2re+r}, v{C+r}, v{Sn+r}'); e(f'v_cvt_pk_f16_f32 v{M2im+r}, -v{Sn+r}, v{C+r}')
        e(f'v_cvt_pk_bf16_f32 v{M3re+r}, v{C+r}, -v{Sn+r}'); e(f'v_cvt_pk_bf16_f32 v{M3im+r}, v{Sn+r}, v{C+r}')
    sincos(fn,fqj,1/2048,T3c,T3s)
    for r in range(4):
        e(f'v_mul_f32 v{T3c+r}, {fhex(2.0**-16)}, v{T3c+r}'); e(f'v_mul_f32 v{T3s+r}, {fhex(2.0**-16)}, v{T3s+r}')
    sincos(fn,fqj,1/128,C,Sn)
    for r in range(4):
        e(f'v_cvt_pk_bf16_f32 v{M4re+r}, v{C+r}, -v{Sn+r}'); e(f'v_cvt_pk_bf16_f32 v{M4im+r}, v{Sn+r}, v{C+r}')
    zo=voff; szo=k.s(4,1)
    zo=k.v()
    e(f'''v_lshl_or_b32 v{t0}, v{g}, 6, v{n}
    v_mul_u32_u24 v{zo}, {ZP}, v{t0}
    s_mul_i32 s{szo}, s{sj}, 2112
    s_lshl_b32 s{st}, s{sk0}, 2
    s_add_u32 s{szo}, s{szo}, s{st}
    s_add_u32 s{szo}, s{szo}, {WS_Z}''')
    for r in range(1,4): e(f's_add_u32 s{szo+r}, s{szo}, {r*16*ZP}')
    D=k.v(32); Di=lambda p,c: D+(p*2+c)*4
    tmp=k.v(8); wv=k.v(8)
    e('s_waitcnt vmcnt(8)')
    for i in range(4):
        for p in range(i+1,4): e(f'v_swap_b32 v{L+4*i+p}, v{L+4*p+i}')
    op=lambda p: L+4*p
    for p in range(4):
        e(f'v_mfma_f32_16x16x32_f16 {vr(Di(p,0),4)}, {vr(op(p),4)}, {vr(M1re,4)}, 0')
        e(f'v_mfma_f32_16x16x32_f16 {vr(Di(p,1),4)}, {vr(op(p),4)}, {vr(M1im,4)}, 0')
    for p in range(4):
        for r in range(4):
            e(f'v_mul_f32 v{tmp+r}, v{Di(p,0)+r}, v{T1c+r}'); e(f'v_mul_f32 v{tmp+4+r}, v{Di(p,1)+r}, v{T1c+r}')
        for r in range(4): e(f'v_fma_mixlo_f16 v{op(p)+r}, v{Di(p,1)+r}, v{T1s+r}, v{tmp+r}')
        for r in range(4): e(f'v_fma_mixhi_f16 v{op(p)+r}, -v{Di(p,0)+r}, v{T1s+r}, v{tmp+4+r}')
        e(f'v_mfma_f32_16x16x32_f16 {vr(Di(p,0),4)}, {vr(M2re,4)}, {vr(op(p),4)}, 0')
        e(f'v_mfma_f32_16x16x32_f16 {vr(Di(p,1),4)}, {vr(M2im,4)}, {vr(op(p),4)}, 0')
    e('s_waitcnt vmcnt(0)')
    for p in range(4):
        for r in range(4):
            for (dst,src) in ((wv+r,WR),(wv+4+r,WI)):
                if p&1: e(f'v_and_b32 v{dst}, 0xffff0000, v{src+2*r+(p>>1)}')
                else:   e(f'v_lshlrev_b32 v{dst}, 16, v{src+2*r+(p>>1)}')
        for r in range(4):
            e(f'v_mul_f32 v{tmp+r}, v{Di(p,0)+r}, v{wv+r}'); e(f'v_mul_f32 v{tmp+4+r}, v{Di(p,1)+r}, v{wv+r}')
        for r in range(4):
            e(f'v_fma_f32 v{tmp+r}, -v{Di(p,1)+r}, v{wv+4+r}, v{tmp+r}'); e(f'v_fmac_f32 v{tmp+4+r}, v{Di(p,0)+r}, v{wv+4+r}')
        for r in range(4): e(f'v_cvt_pk_bf16_f32 v{op(p)+r}, v{tmp+r}, v{tmp+4+r}')
        e(f'v_mfma_f32_16x16x32_bf16 {vr(Di(p,0),4)}, {vr(op(p),4)}, {vr(M3re,4)}, 0')
        e(f'v_mfma_f32_16x16x32_bf16 {vr(Di(p,1),4)}, {vr(op(p),4)}, {vr(M3im,4)}, 0')
    for p in range(4):
        for r in range(4):
            e(f'v_mul_f32 v{tmp+r}, v{Di(p,0)+r}, v{T3c+r}'); e(f'v_mul_f32 v{tmp+4+r}, v{Di(p,1)+r}, v{T3c+r}')
        for r in range(4):
            e(f'v_fma_f32 v{tmp+r}, -v{Di(p,1)+r}, v{T3s+r}, v{tmp+r}'); e(f'v_fmac_f32 v{tmp+4+r}, v{Di(p,0)+r}, v{T3s+r}')
        for r in range(4): e(f'v_cvt_pk_bf16_f32 v{op(p)+r}, v{tmp+r}, v{tmp+4+r}')
        e(f'v_mfma_f32_16x16x32_bf16 {vr(Di(p,0),4)}, {vr(M4re,4)}, {vr(op(p),4)}, 0')
        e(f'v_mfma_f32_16x16x32_bf16 {vr(Di(p,1),4)}, {vr(M4im,4)}, {vr(op(p),4)}, 0')
    O=WR
    assert WI==WR+8 and WR%2==0
    for p in range(4):
        for r in range(4): e(f'v_cvt_pk_bf16_f32 v{O+4*r+p}, v{Di(p,0)+r}, v{Di(p,1)+r}')
    for r in range(4): e(f'buffer_store_dwordx4 {vr(O+4*r,4)}, v{zo}, {sr(sw,4)}, s{szo+r} offen')
    e('K2_END:'); e('s_endpgm')
    return k

def k3():
    RP=576
    k=K('fft_rows_inv_kernel',256,512,8*RP*4)
    e=k.e
    e('s_cmp_ge_u32 s2, 256'); e('s_cbranch_scc1 K3_END')
    sw=srd(k,A_WS,WS_BYTES); sx=srd(k,A_X,4194304); sb=srd(k,A_BWR,2048); so_=srd(k,A_OUT,4194304)
    n=k.v(); g=k.v(); w=k.v(); zoff=k.v(); xoff=k.v(); boff=k.v(); t0=k.v(); t1=k.v(); t2=k.v()
    sz=k.s(); ssoff=k.s(); sw_=k.s()
    e(f'''v_and_b32 v{n}, 15, v0
    v_bfe_u32 v{g}, v0, 4, 2
    v_lshrrev_b32 v{w}, 6, v0
    v_mul_u32_u24 v{t2}, 4224, v{g}
    v_lshl_add_u32 v{zoff}, v{n}, 4, v{t2}
    v_lshl_add_u32 v{zoff}, v{w}, 8, v{zoff}
    s_mul_i32 s{sz}, s2, {ZP}
    s_add_u32 s{sz}, s{sz}, {WS_Z}
    v_lshlrev_b32 v{boff}, 6, v{n}
    v_lshl_or_b32 v{boff}, v{g}, 4, v{boff}
    v_lshl_or_b32 v{xoff}, v{w}, 19, v{boff}
    s_lshl_b32 s{ssoff}, s2, 11
    v_readfirstlane_b32 s{sw_}, v{w}
    s_waitcnt lgkmcnt(0)''')
    L=k.v(8); NL=k.v(2); X=k.v(8); BW=k.v(8)
    e(f'buffer_load_dwordx4 {vr(L,4)}, v{zoff}, {sr(sw,4)}, s{sz} offen')
    e(f'buffer_load_dwordx4 {vr(L+4,4)}, v{zoff}, {sr(sw,4)}, s{sz} offen offset:2112')
    e(f'buffer_load_dword v{NL}, v{t2}, {sr(sw,4)}, s{sz} offen offset:{515*4}')
    e(f'v_add_u32 v{t0}, 2112, v{t2}')
    e(f'buffer_load_dword v{NL+1}, v{t0}, {sr(sw,4)}, s{sz} offen offset:{515*4}')
    e(f'buffer_load_dwordx4 {vr(X,4)}, v{xoff}, {sr(sx,4)}, s{ssoff} offen')
    e(f'buffer_load_dwordx4 {vr(X+4,4)}, v{xoff}, {sr(sx,4)}, s{ssoff} offen offset:1024')
    e(f'buffer_load_dwordx4 {vr(BW,4)}, v{boff}, {sr(sb,4)}, 0 offen')
    e(f'buffer_load_dwordx4 {vr(BW+4,4)}, v{boff}, {sr(sb,4)}, 0 offen offset:1024')
    T=k.v(32)
    R8=k.v(2); par=k.v()
    e(f'''v_and_b32 v{par}, 1, v{n}
    v_lshrrev_b32 v{T}, 1, v{n}
    v_mul_u32_u24 v{T+1}, v{T}, v{g}
    v_sub_u32 v{T+1}, v{par}, v{T+1}
    v_lshlrev_b32 v{T+1}, 1, v{T+1}
    v_sub_u32 v{T+2}, v{T+1}, v{T}
    v_cvt_f32_i32 v{T+1}, v{T+1}
    v_cvt_f32_i32 v{T+2}, v{T+2}
    v_mul_f32 v{T+1}, {fhex(1/8)}, v{T+1}
    v_mul_f32 v{T+2}, {fhex(1/8)}, v{T+2}
    v_cos_f32 v{T+3}, v{T+1}
    v_sin_f32 v{T+4}, v{T+1}
    v_cos_f32 v{T+5}, v{T+2}
    v_sin_f32 v{T+6}, v{T+2}
    v_cvt_pk_bf16_f32 v{R8}, v{T+3}, v{T+4}
    v_cvt_pk_bf16_f32 v{R8+1}, v{T+5}, v{T+6}''')
    wa=k.v(); ra=k.v(); nra=k.v(); nwa=k.v()
    e(f'''v_lshrrev_b32 v{T}, 1, v{w}
    v_lshlrev_b32 v{T}, 6, v{T}
    v_lshl_add_u32 v{T}, v{w}, 8, v{T}
    v_lshl_add_u32 v{T}, v{n}, 4, v{T}
    v_mul_u32_u24 v{nwa}, {2*RP*4}, v{g}
    v_add_u32 v{wa}, v{T}, v{nwa}
    v_mul_u32_u24 v{nra}, {RP*4}, v{w}
    v_mul_u32_u24 v{T}, {144*4}, v{g}
    v_lshl_add_u32 v{T}, v{n}, 2, v{T}
    v_add_u32 v{ra}, v{T}, v{nra}''')
    fq=k.v(8); fb=k.v(2); fn=k.v(); sgn=k.v(); nyf=k.v()
    e(f'''v_lshlrev_b32 v{t0}, 2, v{g}
    v_cvt_f32_u32 v{t0}, v{t0}
    v_and_b32 v{t1}, 12, v{n}
    v_add_u32 v{t1}, v{t1}, v{n}
    v_cvt_f32_u32 v{fb}, v{t1}
    v_mul_f32 v{fb}, {fhex(1/32)}, v{fb}
    v_add_f32 v{fb+1}, {fhex(4/32)}, v{fb}
    v_cvt_f32_u32 v{fn}, v{n}
    v_mul_f32 v{fn}, {fhex(1/32)}, v{fn}
    v_mul_u32_u24 v{sgn}, 0x8000, v{par}
    v_lshl_or_b32 v{sgn}, v{sgn}, 16, v{sgn}
    v_lshlrev_b32 v{nyf}, 31, v{par}
    v_or_b32 v{nyf}, 1.0, v{nyf}
    v_cmp_eq_u32 vcc, 0, v{g}
    v_cndmask_b32 v{nyf}, 0, v{nyf}, vcc''')
    for v in range(2):
        for r in range(4): e(f'v_add_f32 v{fq+4*v+r}, {fhex(16*v+r)}, v{t0}')
    IA=k.v(16); IAi=lambda u,c: IA+(u*2+c)*4
    IB=k.v(16); IBi=lambda t,v: IB+(t*2+v)*4
    for u in range(2):
        for r in range(4): e(f'v_mul_f32 v{T+4*u+r}, v{fb+u}, v{fq+r}')
    for r in range(4): e(f'v_mul_f32 v{T+8+r}, v{fn}, v{fq+r}')
    for i in range(12):
        e(f'v_cos_f32 v{T+12+i}, v{T+i}'); e(f'v_sin_f32 v{T+i}, v{T+i}')
    for u in range(2):
        for r in range(4):
            e(f'v_cvt_pk_bf16_f32 v{IAi(u,0)+r}, v{T+12+4*u+r}, -v{T+4*u+r}')
            e(f'v_cvt_pk_bf16_f32 v{IAi(u,1)+r}, v{T+4*u+r}, v{T+12+4*u+r}')
    for r in range(4): e(f'v_cvt_pk_bf16_f32 v{IBi(0,0)+r}, v{T+20+r}, -v{T+8+r}')
    for r in range(4): e(f'v_xor_b32 v{IBi(0,1)+r}, v{IBi(0,0)+r}, v{sgn}')
    for v in range(2):
        for r in range(4):
            if r&1: e(f'v_xor_b32 v{IBi(1,v)+r}, 0x80008000, v{IBi(0,v)+r}')
            else:   e(f'v_mov_b32 v{IBi(1,v)+r}, v{IBi(0,v)+r}')
    TC=k.v(16); TS=k.v(16); ti=lambda u,v,r:(u*2+v)*4+r
    for u in range(2): e(f'v_mul_f32 v{fb+u}, {fhex(1/32)}, v{fb+u}')
    for u in range(2):
        for v in range(2):
            for r in range(4): e(f'v_mul_f32 v{T+ti(u,v,r)}, v{fb+u}, v{fq+4*v+r}')
    for i in range(16):
        e(f'v_cos_f32 v{TC+i}, v{T+i}'); e(f'v_sin_f32 v{TS+i}, v{T+i}')
    B=k.v(8); Dr=T; O=T+20
    e('s_waitcnt vmcnt(6)')
    for p in range(4):
        e(f'v_mov_b32 v{B+2*p}, v{L+p}'); e(f'v_mov_b32 v{B+2*p+1}, v{L+4+p}')
    for p in range(4): e(f'v_mfma_f32_16x16x16_bf16 {vr(Dr+4*p,4)}, {vr(R8,2)}, {vr(B+2*p,2)}, 0')
    e('s_waitcnt vmcnt(4)')
    e(f'v_mfma_f32_16x16x16_bf16 {vr(Dr+16,4)}, {vr(R8,2)}, {vr(NL,2)}, 0')
    for u in range(2):
        for p in range(4): e(f'v_cvt_pk_bf16_f32 v{O+4*u+p}, v{Dr+4*p+2*u}, v{Dr+4*p+2*u+1}')
        e(f'ds_write_b128 v{wa}, {vr(O+4*u,4)} offset:{u*RP*4}')
    e(f'ds_write_b32 v{nwa}, v{Dr+16} offset:{128*4}')
    e(f'ds_write_b32 v{nwa}, v{Dr+18} offset:{128*4+RP*4}')
    H=k.v(16); Wf=k.v(16)
    e('s_waitcnt vmcnt(0)')
    for (dst,src) in ((H,X),(Wf,BW)):
        for q in range(8):
            e(f'v_lshlrev_b32 v{dst+2*q}, 16, v{src+q}'); e(f'v_and_b32 v{dst+2*q+1}, 0xffff0000, v{src+q}')
    e('s_waitcnt lgkmcnt(0)'); e('s_barrier')
    opU=B; UN=NL
    for v in range(2):
        e(f'ds_read2_b32 {vr(opU+4*v,2)}, v{ra} offset0:{16*v} offset1:{16*v+32}')
        e(f'ds_read2_b32 {vr(opU+4*v+2,2)}, v{ra} offset0:{16*v+64} offset1:{16*v+96}')
    e(f'ds_read_b32 v{UN}, v{nra} offset:{128*4}')
    Ti=lambda u,v,c: T+((u*2+v)*2+c)*4
    for v in range(2):
        e(f's_waitcnt lgkmcnt({3-2*v})')
        for u in range(2):
            for c in range(2):
                e(f'v_mfma_f32_16x16x32_bf16 {vr(Ti(u,v,c),4)}, {vr(opU+4*v,4)}, {vr(IAi(u,c),4)}, 0')
    e('s_waitcnt lgkmcnt(0)')
    for u in range(2): e(f'v_fmac_f32 v{Ti(u,0,0)}, v{nyf}, v{UN}')
    tmp=k.v(8); opT=k.v(16); oT=lambda u,v: opT+(u*2+v)*4
    Hi=lambda t,u: H+(t*2+u)*4
    for v in range(2):
        for u in range(2):
            for r in range(4):
                e(f'v_mul_f32 v{tmp+r}, v{Ti(u,v,0)+r}, v{TC+ti(u,v,r)}'); e(f'v_mul_f32 v{tmp+4+r}, v{Ti(u,v,1)+r}, v{TC+ti(u,v,r)}')
            for r in range(4):
                e(f'v_fma_f32 v{tmp+r}, -v{Ti(u,v,1)+r}, v{TS+ti(u,v,r)}, v{tmp+r}'); e(f'v_fmac_f32 v{tmp+4+r}, v{Ti(u,v,0)+r}, v{TS+ti(u,v,r)}')
            for r in range(4): e(f'v_cvt_pk_bf16_f32 v{oT(u,v)+r}, v{tmp+r}, v{tmp+4+r}')
            for t in range(2):
                e(f'v_mfma_f32_16x16x32_bf16 {vr(Hi(t,u),4)}, {vr(oT(u,v),4)}, {vr(IBi(t,v),4)}, {vr(Hi(t,u),4)}')
    a0=k.v(); a1=k.v(); a2=k.v(); a3=k.v(); dl=k.v(); mb=k.v()
    smb=k.s(); src=k.s()
    order=[0,1,2,3,8,9,10,11,4,5,6,7,12,13,14,15]
    e(f'v_add_f32 v{a0}, v{H+order[0]}, v{H+order[1]}'); e(f'v_add_f32 v{a1}, v{H+order[2]}, v{H+order[3]}')
    for i in range(4,16): e(f'v_add_f32 v{a0 if i%2==0 else a1}, v{a0 if i%2==0 else a1}, v{H+order[i]}')
    e(f'v_add_f32 v{a0}, v{a0}, v{a1}')
    reduce_sum(k,[a0])
    e(f'v_mul_f32 v{a0}, {fhex(1/1024)}, v{a0}')
    e(f'v_cvt_pk_bf16_f32 v{mb}, v{a0}, v{a0}')
    e(f'v_and_b32 v{mb}, 0xffff0000, v{mb}')
    e(f'v_sub_f32 v{dl}, v{a0}, v{mb}')
    e(f'v_readlane_b32 s{smb}, v{mb}, 63')
    for i in range(16): e(f'v_subrev_f32 v{H+i}, s{smb}, v{H+i}')
    e(f'v_mul_f32 v{a0}, v{H}, v{H}'); e(f'v_mul_f32 v{a1}, v{H+1}, v{H+1}')
    e(f'v_mul_f32 v{a2}, v{H}, v{Wf}'); e(f'v_mul_f32 v{a3}, v{H+1}, v{Wf+1}')
    for i in range(2,16):
        e(f'v_fmac_f32 v{a0 if i%2==0 else a1}, v{H+i}, v{H+i}')
        e(f'v_fmac_f32 v{a2 if i%2==0 else a3}, v{H+i}, v{Wf+i}')
    e(f'v_add_f32 v{a0}, v{a0}, v{a1}'); e(f'v_add_f32 v{a2}, v{a2}, v{a3}')
    reduce_sum(k,[a0,a2])
    e(f'v_mul_f32 v{a0}, {fhex(1/1024)}, v{a0}')
    e(f'v_fma_f32 v{a0}, -v{dl}, v{dl}, v{a0}')
    round_bf16(k,a0)
    e(f'v_add_f32 v{a0}, {fhex(1e-5)}, v{a0}')
    round_bf16(k,a0)
    e(f'v_sqrt_f32 v{a0}, v{a0}')
    round_bf16(k,a0)
    e(f'v_rcp_f32 v{a1}, v{a0}')
    e(f'v_add_f32 v{a3}, 1.0, v{a1}')
    e(f'v_readlane_b32 s{src}, v{a3}, 63')
    vm=tmp
    e(f'v_mov_b32 v{vm}, s{smb}')
    for i in range(16): e(f'v_fma_f32 v{H+i}, v{H+i}, s{src}, v{vm}')
    for t in range(2):
        for q in range(4): e(f'v_cvt_pk_bf16_f32 v{X+4*t+q}, v{H+8*t+2*q}, v{H+8*t+2*q+1}')
        e(f'buffer_store_dwordx4 {vr(X+4*t,4)}, v{xoff}, {sr(so_,4)}, s{ssoff} offen offset:{1024*t}')
    srow=k.s(); st=k.s(); ST=k.v(2)
    e(f'''s_lshl_b32 s{srow}, s{sw_}, 8
    s_add_u32 s{srow}, s{srow}, s2
    v_mul_f32 v{a2}, v{a2}, v{a1}
    v_cvt_pk_bf16_f32 v{a2}, v{a2}, v{a2}
    v_ashrrev_i32 v{a3}, 31, v{a2}
    v_or_b32 v{a3}, 0x80000000, v{a3}
    v_xor_b32 v{a2}, v{a2}, v{a3}
    v_and_b32 v{a2}, 0xffff0000, v{a2}
    s_sub_u32 s{st}, 0x87ff, s{srow}
    v_or_b32 v{a2}, s{st}, v{a2}
    v_add_f32 v{a0}, 1.0, v{a0}
    v_rcp_f32 v{ST+1}, v{a0}
    v_mov_b32 v{ST}, v{mb}
    s_lshl_b32 s{st}, s{srow}, 2
    v_mov_b32 v{t0}, s{st}
    v_lshlrev_b32 v{t1}, 1, v{t0}
    s_mov_b32 s{srow}, {WS_KEYS}
    s_mov_b32 s{st}, {WS_STATS}
    s_mov_b32 exec_lo, 0
    s_mov_b32 exec_hi, 0x80000000
    buffer_store_dword v{a2}, v{t0}, {sr(sw,4)}, s{srow} offen
    buffer_store_dwordx2 {vr(ST,2)}, v{t1}, {sr(sw,4)}, s{st} offen''')
    e('K3_END:'); e('s_endpgm')
    return k

def wave_max_u32(k, dst, src):
    e=k.e
    first=True
    for ctl in ('quad_perm:[1,0,3,2] row_mask:0xf bank_mask:0xf','quad_perm:[2,3,0,1] row_mask:0xf bank_mask:0xf',
                'row_half_mirror row_mask:0xf bank_mask:0xf','row_mirror row_mask:0xf bank_mask:0xf',
                'row_bcast:15 row_mask:0xa bank_mask:0xf','row_bcast:31 row_mask:0xc bank_mask:0xf'):
        s=src if first else dst
        e(f'v_max_u32_dpp v{dst}, v{s}, v{s} {ctl}'); first=False

def k4():
    k=K('ffn_gateup_kernel',224,512,16384+256)
    e=k.e
    e('s_cmp_ge_u32 s2, 224'); e('s_cbranch_scc1 K4_END')
    sw=srd(k,A_WS,WS_BYTES); sg=srd(k,A_WG,1024*3584*2); su=srd(k,A_WU,1024*3584*2); so_=srd(k,A_OUT,4194304)
    l=k.v(); lo3=k.v(); kr=k.v(); g=k.v(); w=k.v(); t0=k.v(); t1=k.v(); voff=k.v(); krow=k.v()
    sf0=k.s(); st=k.s(); st2=k.s(); skeys=k.s(); soff=k.s(16,1)
    e(f'''s_and_b32 s{sf0}, s2, 7
    s_mul_i32 s{sf0}, s{sf0}, 28
    s_lshr_b32 s{st}, s2, 3
    s_add_u32 s{sf0}, s{sf0}, s{st}
    s_lshl_b32 s{sf0}, s{sf0}, 5
    v_and_b32 v{l}, 63, v0
    v_and_b32 v{lo3}, 7, v0
    v_bfe_u32 v{kr}, v0, 3, 1
    v_bfe_u32 v{g}, v0, 4, 2
    v_lshrrev_b32 v{w}, 6, v0
    v_lshlrev_b32 v{krow}, 7, v{w}
    v_lshl_or_b32 v{krow}, v{kr}, 5, v{krow}
    v_lshl_or_b32 v{krow}, v{g}, 3, v{krow}
    v_mul_u32_u24 v{voff}, 7168, v{krow}
    v_lshl_add_u32 v{voff}, v{lo3}, 2, v{voff}
    v_lshlrev_b32 v{t0}, 4, v0
    s_mov_b32 s{skeys}, {WS_KEYS}''')
    for ee in range(2):
        for i in range(8): e(f's_add_u32 s{soff+8*ee+i}, s{sf0}, {(64*ee+i)*7168}')
    e('s_waitcnt lgkmcnt(0)')
    Kk=k.v(4); G=k.v(32)
    e(f'buffer_load_dwordx4 {vr(Kk,4)}, v{t0}, {sr(sw,4)}, s{skeys} offen')
    for m,sm in enumerate((sg,su)):
        for i in range(16): e(f'buffer_load_dword v{G+16*m+i}, v{voff}, {sr(sm,4)}, s{soff+i} offen')
    e('s_waitcnt vmcnt(32)')
    def cx(a,b):
        e(f'v_max_u32 v{t0}, v{a}, v{b}'); e(f'v_min_u32 v{b}, v{a}, v{b}'); e(f'v_mov_b32 v{a}, v{t0}')
    cx(Kk,Kk+1); cx(Kk+2,Kk+3); cx(Kk,Kk+2); cx(Kk+1,Kk+3); cx(Kk+1,Kk+2)
    sel=k.v(); sit=k.s(); sm_=k.s(); sph=k.s(); la=k.v()
    e(f'''v_lshlrev_b32 v{la}, 5, v{w}
    v_lshl_add_u32 v{la}, v{lo3}, 2, v{la}
    s_mov_b32 s{sph}, 0
    K4_PHASE:
    s_mov_b32 s{sit}, 0
    v_mov_b32 v{sel}, 0
    K4_LOOP:
    s_nop 1''')
    wave_max_u32(k,t0,Kk)
    e(f'''v_readlane_b32 s{sm_}, v{t0}, 63
    v_cmp_eq_u32 vcc, s{sit}, v{lo3}
    v_mov_b32 v{t1}, s{sm_}
    v_cndmask_b32 v{sel}, v{sel}, v{t1}, vcc
    v_cmp_eq_u32 vcc, s{sm_}, v{Kk}
    v_cndmask_b32 v{Kk}, v{Kk}, v{Kk+1}, vcc
    v_cndmask_b32 v{Kk+1}, v{Kk+1}, v{Kk+2}, vcc
    v_cndmask_b32 v{Kk+2}, v{Kk+2}, v{Kk+3}, vcc
    v_cndmask_b32 v{Kk+3}, v{Kk+3}, 0, vcc
    s_add_u32 s{sit}, s{sit}, 1
    s_cmp_lt_u32 s{sit}, 8
    s_cbranch_scc1 K4_LOOP
    s_cmp_lg_u32 s{sph}, 0
    s_cbranch_scc1 K4_SELDONE
    ds_write_b32 v{la}, v{sel} offset:16384
    v_lshlrev_b32 v{t0}, 2, v{l}
    s_waitcnt lgkmcnt(0)
    s_barrier
    ds_read_b32 v{Kk}, v{t0} offset:16384
    v_mov_b32 v{Kk+1}, 0
    v_mov_b32 v{Kk+2}, 0
    v_mov_b32 v{Kk+3}, 0
    s_mov_b32 s{sph}, 1
    s_waitcnt lgkmcnt(0)
    s_branch K4_PHASE
    K4_SELDONE:
    s_nop 1''')
    row=k.v(); XB=k.v(8); ST=k.v(2)
    e(f'''v_and_b32 v{row}, 0x7ff, v{sel}
    v_sub_u32 v{row}, 0x7ff, v{row}
    v_lshlrev_b32 v{t0}, 11, v{row}
    v_lshl_add_u32 v{t0}, v{krow}, 1, v{t0}
    v_lshlrev_b32 v{t1}, 3, v{row}
    s_mov_b32 s{st}, {WS_STATS}
    buffer_load_dwordx4 {vr(XB,4)}, v{t0}, {sr(so_,4)}, 0 offen
    buffer_load_dwordx4 {vr(XB+4,4)}, v{t0}, {sr(so_,4)}, 0 offen offset:128
    buffer_load_dwordx2 {vr(ST,2)}, v{t1}, {sr(sw,4)}, s{st} offen''')
    e(f'''s_cmp_lg_u32 s2, 0
    s_cbranch_scc1 K4_NOSEL
    v_lshlrev_b32 v{t1}, 2, v{lo3}
    s_mov_b32 s{st}, {WS_SEL}
    buffer_store_dword v{sel}, v{t1}, {sr(sw,4)}, s{st} offen
    s_waitcnt vmcnt(0)
    K4_NOSEL:''')
    OP=k.v(32); opi=lambda m,ee,par: OP+((m*2+ee)*2+par)*4
    sp0=k.s(); sp1=k.s()
    e(f's_mov_b32 s{sp0}, 0x05040100'); e(f's_mov_b32 s{sp1}, 0x07060302')
    e('s_waitcnt vmcnt(3)')
    for m in range(2):
        for ee in range(2):
            for par in range(2):
                for q in range(4):
                    b=G+16*m+8*ee+2*q
                    e(f'v_perm_b32 v{opi(m,ee,par)+q}, v{b+1}, v{b}, s{sp1 if par else sp0}')
    e('s_waitcnt vmcnt(0)')
    U=G
    e(f'v_mul_f32 v{ST}, v{ST}, v{ST+1}')
    for q in range(8):
        e(f'v_lshlrev_b32 v{U+2*q}, 16, v{XB+q}'); e(f'v_and_b32 v{U+2*q+1}, 0xffff0000, v{XB+q}')
    for i in range(16): e(f'v_fma_f32 v{U+i}, v{U+i}, v{ST+1}, -v{ST}')
    for q in range(8): e(f'v_cvt_pk_bf16_f32 v{XB+q}, v{U+2*q}, v{U+2*q+1}')
    D=G+16; Di=lambda m,par: D+(m*2+par)*4
    for ee in range(2):
        for m in range(2):
            for par in range(2):
                c = '0' if ee==0 else vr(Di(m,par),4)
                e(f'v_mfma_f32_16x16x32_bf16 {vr(Di(m,par),4)}, {vr(opi(m,ee,par),4)}, {vr(XB+4*ee,4)}, {c}')
    e(f'''v_lshl_add_u32 v{t0}, v{w}, 1, v{kr}
    v_lshlrev_b32 v{t0}, 10, v{t0}
    v_lshl_add_u32 v{t0}, v{lo3}, 5, v{t0}
    v_and_b32 v{t1}, 1, v{g}
    v_lshl_add_u32 v{t0}, v{t1}, 4, v{t0}
    v_lshrrev_b32 v{t1}, 1, v{g}
    v_cmp_eq_u32 vcc, v{t1}, v{kr}
    s_mov_b64 exec, vcc''')
    for m in range(2):
        for par in range(2): e(f'ds_write_b128 v{t0}, {vr(Di(m,par),4)} offset:{m*512+par*256}')
    e(f'''s_mov_b64 exec, -1
    v_readfirstlane_b32 s{st}, v{w}
    v_lshlrev_b32 v{t0}, 2, v0
    s_waitcnt lgkmcnt(0)
    s_barrier
    s_cmp_ge_u32 s{st}, 2
    s_cbranch_scc1 K4_END''')
    R=OP
    for pi in range(16): e(f'ds_read2st64_b32 {vr(R+2*pi,2)}, v{t0} offset0:{pi*4} offset1:{pi*4+2}')
    e('s_waitcnt lgkmcnt(0)')
    for step in (16,8,4,2):
        for i in range(step): e(f'v_add_f32 v{R+i}, v{R+i}, v{R+step+i}')
    gg=R; uu=R+1; tt=R+2
    round_bf16(k,gg); round_bf16(k,uu)
    e(f'''v_mul_f32 v{tt}, {fhex(-1.4426950408889634)}, v{gg}
    v_exp_f32 v{tt}, v{tt}
    v_add_f32 v{tt}, 1.0, v{tt}
    v_rcp_f32 v{tt}, v{tt}
    v_mul_f32 v{gg}, v{gg}, v{tt}''')
    round_bf16(k,gg)
    e(f'''v_mul_f32 v{gg}, v{gg}, v{uu}
    v_cvt_pk_bf16_f32 v{gg}, v{gg}, v{gg}
    v_bfe_u32 v{t0}, v0, 3, 3
    v_mul_u32_u24 v{t0}, 7168, v{t0}
    v_lshl_add_u32 v{t0}, v{lo3}, 2, v{t0}
    v_lshl_add_u32 v{t0}, v{w}, 1, v{t0}
    s_add_u32 s{st}, s{sf0}, {WS_ACT}
    buffer_store_short v{gg}, v{t0}, {sr(sw,4)}, s{st} offen''')
    e('K4_END:'); e('s_endpgm')
    return k

def k5():
    k=K('ffn_down_kernel',224,256,16384)
    e=k.e
    e('s_cmp_ge_u32 s2, 224'); e('s_cbranch_scc1 K5_END')
    sw=srd(k,A_WS,WS_BYTES); sd=srd(k,A_WD,3584*1024*2)
    lo3=k.v(); kr=k.v(); g=k.v(); w=k.v(); t0=k.v(); t1=k.v(); voff=k.v(); krow=k.v()
    scb=k.s(); sks=k.s(); sbase=k.s(4,1); st=k.s()
    e(f'''s_and_b32 s{scb}, s2, 15
    s_lshr_b32 s{sks}, s2, 4
    v_and_b32 v{lo3}, 7, v0
    v_bfe_u32 v{kr}, v0, 3, 1
    v_bfe_u32 v{g}, v0, 4, 2
    v_lshrrev_b32 v{w}, 6, v0
    v_lshlrev_b32 v{krow}, 6, v{w}
    v_lshl_or_b32 v{krow}, v{kr}, 5, v{krow}
    v_lshl_or_b32 v{krow}, v{g}, 3, v{krow}
    v_lshlrev_b32 v{voff}, 11, v{krow}
    v_lshl_or_b32 v{voff}, v{lo3}, 4, v{voff}
    s_lshl_b32 s{sbase}, s{sks}, 19
    s_lshl_b32 s{st}, s{scb}, 7
    s_add_u32 s{sbase}, s{sbase}, s{st}
    s_add_u32 s{sbase+1}, s{sbase}, 4096
    s_add_u32 s{sbase+2}, s{sbase}, 8192
    s_add_u32 s{sbase+3}, s{sbase}, 12288
    v_mul_u32_u24 v{t0}, 7168, v{lo3}
    v_lshl_add_u32 v{t0}, v{krow}, 1, v{t0}
    s_lshl_b32 s{st}, s{sks}, 9
    s_add_u32 s{st}, s{st}, {WS_ACT}
    s_waitcnt lgkmcnt(0)''')
    L=k.v(32); XB=k.v(4); OP=k.v(32)
    e(f'buffer_load_dwordx4 {vr(XB,4)}, v{t0}, {sr(sw,4)}, s{st} offen')
    for i in range(8): e(f'buffer_load_dwordx4 {vr(L+4*i,4)}, v{voff}, {sr(sd,4)}, s{sbase+(i>>1)} offen offset:{2048*(i&1)}')
    sp0=k.s(); sp1=k.s()
    e(f's_mov_b32 s{sp0}, 0x05040100'); e(f's_mov_b32 s{sp1}, 0x07060302')
    for q in range(4):
        e(f's_waitcnt vmcnt({6-2*q})')
        for j in range(8):
            e(f'v_perm_b32 v{OP+4*j+q}, v{L+4*(2*q+1)+(j>>1)}, v{L+4*(2*q)+(j>>1)}, s{sp1 if j&1 else sp0}')
    D=L
    for j in range(8): e(f'v_mfma_f32_16x16x32_bf16 {vr(D+4*j,4)}, {vr(OP+4*j,4)}, {vr(XB,4)}, 0')
    e(f'''v_lshl_add_u32 v{t0}, v{w}, 1, v{kr}
    v_lshlrev_b32 v{t0}, 11, v{t0}
    v_lshl_add_u32 v{t0}, v{lo3}, 5, v{t0}
    v_and_b32 v{t1}, 1, v{g}
    v_lshl_add_u32 v{t0}, v{t1}, 4, v{t0}
    v_lshrrev_b32 v{t1}, 1, v{g}
    v_cmp_eq_u32 vcc, v{t1}, v{kr}
    s_mov_b64 exec, vcc''')
    for j in range(8): e(f'ds_write_b128 v{t0}, {vr(D+4*j,4)} offset:{j*256}')
    e(f'''s_mov_b64 exec, -1
    v_and_b32 v{t0}, 63, v0
    v_lshlrev_b32 v{t0}, 2, v{t0}
    v_lshl_add_u32 v{t0}, v{w}, 9, v{t0}
    s_waitcnt lgkmcnt(0)
    s_barrier''')
    R=OP
    for pi in range(8): e(f'ds_read2st64_b32 {vr(R+2*pi,2)}, v{t0} offset0:{pi*8} offset1:{pi*8+1}')
    e(f'''v_bfe_u32 v{t1}, v0, 3, 3
    v_lshlrev_b32 v{t1}, 12, v{t1}
    v_lshl_add_u32 v{t1}, v{lo3}, 5, v{t1}
    v_lshl_add_u32 v{t1}, v{w}, 3, v{t1}
    s_lshl_b32 s{st}, s{sks}, 15
    s_lshl_b32 s{scb}, s{scb}, 8
    s_add_u32 s{st}, s{st}, s{scb}
    s_add_u32 s{st}, s{st}, {WS_PART}
    s_waitcnt lgkmcnt(0)''')
    for step in (8,4,2):
        for i in range(step): e(f'v_add_f32 v{R+i}, v{R+i}, v{R+step+i}')
    e(f'buffer_store_dwordx2 {vr(R,2)}, v{t1}, {sr(sw,4)}, s{st} offen')
    e('K5_END:'); e('s_endpgm')
    return k

def k6():
    k=K('ffn_final_kernel',64,64,0)
    e=k.e
    e('s_cmp_ge_u32 s2, 64'); e('s_cbranch_scc1 K6_END')
    sw=srd(k,A_WS,WS_BYTES); so_=srd(k,A_OUT,4194304)
    t0=k.v(); t1=k.v(); key=k.v(); o=k.v(); R=k.v(28); sg=k.v()
    st=k.s(); sp=k.s(14,1); stok=k.s(); sc=k.s()
    e(f'''s_lshr_b32 s{stok}, s2, 3
    s_and_b32 s{sc}, s2, 7
    s_lshl_b32 s{st}, s{stok}, 2
    s_add_u32 s{st}, s{st}, {WS_SEL}
    v_mov_b32 v{t0}, 0
    v_lshlrev_b32 v{t1}, 3, v0
    s_lshl_b32 s{sp}, s2, 9
    s_add_u32 s{sp}, s{sp}, {WS_PART}''')
    for i in range(1,14): e(f's_add_u32 s{sp+i}, s{sp}, {i*32768}')
    e('s_waitcnt lgkmcnt(0)')
    e(f'buffer_load_dword v{key}, v{t0}, {sr(sw,4)}, s{st} offen')
    for i in range(14): e(f'buffer_load_dwordx2 {vr(R+2*i,2)}, v{t1}, {sr(sw,4)}, s{sp+i} offen')
    e(f'''s_waitcnt vmcnt(14)
    v_and_b32 v{t0}, 0x7ff, v{key}
    v_sub_u32 v{t0}, 0x7ff, v{t0}
    v_lshlrev_b32 v{t0}, 11, v{t0}
    v_lshl_add_u32 v{t0}, v0, 2, v{t0}
    s_lshl_b32 s{sc}, s{sc}, 8
    buffer_load_dword v{o}, v{t0}, {sr(so_,4)}, s{sc} offen
    v_ashrrev_i32 v{sg}, 31, v{key}
    v_not_b32 v{sg}, v{sg}
    v_or_b32 v{sg}, 0x80000000, v{sg}
    v_xor_b32 v{sg}, v{sg}, v{key}
    v_and_b32 v{sg}, 0xffff0000, v{sg}
    v_mul_f32 v{sg}, {fhex(-1.4426950408889634)}, v{sg}
    v_exp_f32 v{sg}, v{sg}
    v_add_f32 v{sg}, 1.0, v{sg}
    v_rcp_f32 v{sg}, v{sg}''')
    round_bf16(k,sg)
    e('s_waitcnt vmcnt(1)')
    for i in range(14): e(f'v_add_f32 v{R+i}, v{R+i}, v{R+14+i}')
    for i in range(6): e(f'v_add_f32 v{R+i}, v{R+i}, v{R+8+i}')
    for step in (4,2):
        for i in range(step): e(f'v_add_f32 v{R+i}, v{R+i}, v{R+step+i}')
    for i in range(2):
        round_bf16(k,R+i)
        e(f'v_mul_f32 v{R+i}, v{R+i}, v{sg}')
        round_bf16(k,R+i)
    e(f'''s_waitcnt vmcnt(0)
    v_lshlrev_b32 v{R+2}, 16, v{o}
    v_and_b32 v{R+3}, 0xffff0000, v{o}
    v_add_f32 v{R}, v{R}, v{R+2}
    v_add_f32 v{R+1}, v{R+1}, v{R+3}
    v_cvt_pk_bf16_f32 v{o}, v{R}, v{R+1}
    buffer_store_dword v{o}, v{t0}, {sr(so_,4)}, s{sc} offen''')
    e('K6_END:'); e('s_endpgm')
    return k

if __name__=='__main__':
    ks=[k1(),k2(),k3(),k4(),k5(),k6()]
    txt=build(ks)
    open(sys.argv[1],'w').write(txt)
    for k in ks: print(k.name,'vgpr',k.maxv,'sgpr',k.ns,'instr',len(k.L),'nops',k.nnops)
```

```python
from gen import *
def kempty(name, grid=256, block=256):
    k=K(name,grid,block,0); k.e('s_endpgm'); return k
ks=[k1(),k2(),k3(),k4(),k5(),k6()]
E=kempty('empty_kernel')
open('e1_a.s','w').write(build(ks+[E], ks+[E]*4))
open('e1_b.s','w').write(build(ks+[E], [E]*4+ks))
open('e1_c.s','w').write(build(ks, [ks[0]]*3+ks[1:]))
open('e1_d.s','w').write(build(ks, ks[:1]+[ks[1]]*3+ks[2:]))
open('e1_e.s','w').write(build(ks, ks[:2]+[ks[2]]*3+ks[3:]))
open('e1_f.s','w').write(build(ks, ks[:3]+[ks[3]]*3+ks[4:]))
```

```python
import re

TRANS = ('v_exp_f32','v_log_f32','v_rcp_f32','v_rsq_f32','v_sqrt_f32','v_sin_f32','v_cos_f32','v_rcp_iflag_f32')

def regset(tok):
    tok = tok.strip()
    tok = tok.lstrip('-')
    if tok.startswith('abs(') or tok.startswith('|'):
        tok = tok.replace('abs(','').replace(')','').replace('|','')
    m = re.fullmatch(r'([vsa])(\d+)', tok)
    if m: return {(m.group(1), int(m.group(2)))}
    m = re.fullmatch(r'([vsa])\[(\d+):(\d+)\]', tok)
    if m: return {(m.group(1), i) for i in range(int(m.group(2)), int(m.group(3))+1)}
    if tok == 'vcc': return {('s',106),('s',107)}
    if tok == 'vcc_lo': return {('s',106)}
    if tok == 'vcc_hi': return {('s',107)}
    if tok == 'exec': return {('s',126),('s',127)}
    if tok == 'm0': return {('s',124)}
    return set()

def split_ops(s):
    out=[];depth=0;cur=''
    for ch in s:
        if ch in '[(': depth+=1
        if ch in '])': depth-=1
        if ch==',' and depth==0:
            out.append(cur.strip());cur=''
        else: cur+=ch
    if cur.strip(): out.append(cur.strip())
    return out

class I:
    def __init__(self, text):
        self.text = text
        t = text.split(';')[0].strip()
        self.label = t.endswith(':')
        self.mn = t.split()[0] if t else ''
        rest = t[len(self.mn):].strip()
        ops = split_ops(rest)
        self.mods = ''
        if ops:
            parts = ops[-1].split(None,1)
            ops[-1] = parts[0]
            if len(parts)>1: self.mods = parts[1]
        self.ops = ops
        mn = self.mn
        self.mfma = mn.startswith('v_mfma')
        self.valu = mn.startswith('v_') and not self.mfma
        base = mn.replace('_e32','').replace('_e64','').replace('_dpp','').replace('_sdwa','')
        self.base = base
        self.trans = base in TRANS
        self.dlop = base.startswith('v_dot')
        self.dpp = mn.endswith('_dpp') or 'quad_perm' in self.mods or 'row_' in self.mods
        self.vmem = mn.startswith('buffer_') or mn.startswith('global_')
        self.ds = mn.startswith('ds_')
        self.salu = mn.startswith('s_') and not mn.startswith('s_load')
        self.defs=set(); self.uses=set(); self.srcc=set(); self.srcab=set()
        R = [regset(o) for o in ops]
        U = lambda l: set().union(*l) if l else set()
        if self.label or not mn: return
        if self.mfma:
            self.defs=R[0]; self.srcab=R[1]|R[2]; self.srcc=R[3]; self.uses=self.srcab|self.srcc
            self.passes = 8 if '32x32' in mn else 4
        elif self.valu:
            if base in ('v_swap_b32','v_permlane32_swap_b32','v_permlane16_swap_b32'):
                self.defs=R[0]|R[1]; self.uses=R[0]|R[1]
            elif base in ('v_add_co_u32','v_sub_co_u32','v_addc_co_u32','v_subb_co_u32','v_subrev_co_u32','v_mad_u64_u32'):
                self.defs=R[0]|R[1]; self.uses=U(R[2:])
            else:
                self.defs=R[0]; self.uses=U(R[1:])
                if base in ('v_fmac_f32','v_dot2c_f32_bf16','v_fma_mixlo_f16','v_fma_mixhi_f16','v_writelane_b32') or self.dpp:
                    self.uses |= R[0]
                if base.startswith('v_cmpx'): self.defs |= regset('exec')
        elif self.vmem:
            if '_load' in mn and 'lds' not in self.mods.split():
                self.defs=R[0]; self.uses=U(R[1:])
            elif 'atomic' in mn and 'sc0' in self.mods.split():
                self.defs=R[0]; self.uses=U(R)
            else:
                self.uses=U(R)
        elif self.ds:
            if 'read' in mn or 'permute' in mn or 'swizzle' in mn or 'rtn' in mn:
                self.defs=R[0]; self.uses=U(R[1:])
            else: self.uses=U(R)
        elif mn.startswith('s_'):
            if mn.startswith('s_cmp') or mn.startswith('s_cbranch') or mn in ('s_waitcnt','s_barrier','s_nop','s_endpgm','s_branch','s_sleep','s_setprio'):
                self.uses=U(R)
            else:
                self.defs=R[0] if R else set(); self.uses=U(R[1:])
                if 'saveexec' in mn: self.defs |= regset('exec')
        self.widestore = self.vmem and 'store' in mn and ('x3' in mn or 'x4' in mn)
        self.dstsel = self.valu and (base in ('v_fma_mixlo_f16','v_fma_mixhi_f16') or ('dst_sel' in self.mods and 'dst_sel:DWORD' not in self.mods))
    def states(self):
        if self.label or not self.mn: return 0
        if self.mn=='s_nop': return int(self.ops[0],0)+1
        return 1

def V(s): return {r for r in s if r[0] in 'va'}
def S(s): return {r for r in s if r[0]=='s'}

def need(p, c):
    n=0
    if p.valu:
        pv=V(p.defs); ps=S(p.defs)
        if c.mfma and pv & c.uses: n=max(n, 3 if p.dlop else 2)
        if c.valu:
            if p.trans and not c.trans and pv & c.uses: n=max(n,1)
            if p.trans and c.trans and pv & c.uses: n=max(n,1)
            if c.dpp and pv & c.uses: n=max(n,2)
            if c.base.startswith('v_permlane') and pv & c.uses: n=max(n,2)
            if c.base in ('v_readlane_b32','v_readfirstlane_b32') and pv & c.uses: n=max(n,1)
            if ps & c.uses:
                n=max(n,2)
                if c.base in ('v_readlane_b32','v_writelane_b32') and ps & regset(c.ops[2]): n=max(n,4)
            if c.base=='v_cndmask_b32' and len(c.ops)==3 and ps & regset('vcc'): n=max(n,2)
            if p.dstsel and pv & (c.uses|c.defs): n=max(n,1)
            if p.dlop and pv & (c.uses|c.defs):
                if c.base==p.base and not (pv & set().union(*[regset(o) for o in c.ops[1:3]])): pass
                else: n=max(n,3)
            if regset('exec') & ps:
                if c.dpp: n=max(n,5)
                if c.base in ('v_readlane_b32','v_readfirstlane_b32','v_writelane_b32') or c.base.startswith('v_permlane'): n=max(n,4)
        if c.mfma and regset('exec') & ps: n=max(n,4)
        if (c.vmem) and ps & c.uses: n=max(n,5)
        if (c.vmem or c.ds) and p.dlop and pv & c.uses: n=max(n,3)
        if c.salu and ps & c.uses: n=max(n,1)
    if p.mfma:
        ps_=p.passes
        if c.mfma:
            if p.defs & c.srcab: n=max(n,ps_+4)
            if p.defs & c.srcc:
                if p.defs==c.srcc and c.passes==ps_: pass
                else: n=max(n,ps_+2)
            elif p.defs & c.defs and c.passes!=ps_: n=max(n,ps_+2)
        elif c.valu:
            if p.defs & (c.uses|c.defs): n=max(n,ps_+4)
            if p.srcc & c.defs: n=max(n,ps_-1)
        elif c.vmem or c.ds:
            if p.defs & (c.uses|c.defs): n=max(n,ps_+4)
            if p.srcc & c.defs: n=max(n,ps_-1)
    if p.vmem and p.widestore:
        data=regset(p.ops[0]) if p.mn.startswith('buffer') else regset(p.ops[1])
        if c.valu and data & c.defs: n=max(n,2)
        elif data & c.defs: n=max(n,1)
    if p.salu and ('s',124) in p.defs:
        if (c.vmem and 'lds' in c.mods.split()) or 'addtid' in c.mn or c.mn.startswith('s_movrel'): n=max(n,1)
    return n

def fix_hazards(lines):
    out=[]
    nn=0
    for t in lines:
        c=I(t)
        if not c.label and c.mn and not c.mn.startswith('.'):
            dist=0; req=0
            for p in reversed(out):
                if dist>=20: break
                if p.label or not p.mn or p.mn.startswith('.'): continue
                k=need(p,c)
                if k-dist>req: req=k-dist
                dist+=p.states()
            while req>0:
                k=min(req,16)
                out.append(I(f's_nop {k-1}')); req-=k; nn+=k
        out.append(c)
    return [i.text for i in out], nn

class K:
    def __init__(self, name, grid, block, lds):
        self.name=name; self.grid=grid; self.block=block; self.lds=lds
        self.L=[]; self.nv=1; self.ns=3; self.maxv=1
        self.stamps=None; self.kidx=0
    NST=14
    def stamp_init(self, kidx, on):
        self.kidx=kidx
        if on:
            self.stamps=self.s(2*self.NST,2); self.nst=0
            for i in range(2*self.NST): self.e(f's_mov_b32 s{self.stamps+i}, 0')
            self.stamp()
    def stamp(self, idx=None):
        if self.stamps is None: return
        if idx is not None: self.nst=idx
        assert self.nst<self.NST
        self.e(f's_memrealtime s[{self.stamps+2*self.nst}:{self.stamps+2*self.nst+1}]'); self.nst+=1
    def finish(self, lab, sw):
        self.e(f'{lab}_END:')
        if self.stamps is not None:
            self.e('s_waitcnt vmcnt(0)')
            self.stamp(self.NST-1)
            a=1; d=4; st=3
            self.maxv=max(self.maxv,8)
            self.e(f'''s_mov_b64 exec, 1
            v_lshrrev_b32 v{a}, 6, v0
            v_lshlrev_b32 v{a}, 7, v{a}
            s_lshl_b32 s{st}, s2, 10
            s_add_u32 s{st}, s{st}, {0x1000000+self.kidx*0x80000}
            s_waitcnt lgkmcnt(0)''')
            for q in range(self.NST//2):
                for i in range(4): self.e(f'v_mov_b32 v{d+i}, s{self.stamps+4*q+i}')
                self.e(f'buffer_store_dwordx4 v[{d}:{d+3}], v{a}, s[{sw}:{sw+3}], s{st} offen offset:{16*q}')
                self.e('s_nop 2')
        self.e(f'{lab}_EXIT:')
        self.e('s_endpgm')
    def e(self, s):
        for ln in s.strip().split('\n'):
            ln=ln.strip()
            if ln: self.L.append(ln)
    def v(self, n=1, align=None):
        if align is None: align = 2 if n>1 else 1
        b=(self.nv+align-1)//align*align
        self.nv=b+n; self.maxv=max(self.maxv,self.nv)
        return b
    def s(self, n=1, align=None):
        if align is None: align = 4 if n>=4 else (2 if n>1 else 1)
        b=(self.ns+align-1)//align*align
        self.ns=b+n
        assert self.ns<=102, self.ns
        return b
    def text(self):
        body,nn=fix_hazards(self.L)
        self.nnops=nn
        nv=max(self.maxv,8)
        acc=(nv+3)//4*4
        t=f".text\n.globl {self.name}\n.p2align 8\n.type {self.name},@function\n{self.name}:\n"
        t+=''.join(('' if l.endswith(':') else '    ')+l+'\n' for l in body)
        d=f""".amdhsa_kernel {self.name}
  .amdhsa_next_free_vgpr {nv}
  .amdhsa_next_free_sgpr {max(self.ns,8)}
  .amdhsa_accum_offset {acc}
  .amdhsa_group_segment_fixed_size 0
  .amdhsa_kernarg_size 88
  .amdhsa_user_sgpr_count 2
  .amdhsa_user_sgpr_kernarg_segment_ptr 1
  .amdhsa_system_sgpr_workgroup_id_x 1
  .amdhsa_float_denorm_mode_32 3
.end_amdhsa_kernel
"""
        return t,d

def vr(b,n): return f'v[{b}:{b+n-1}]' if n>1 else f'v{b}'
def sr(b,n): return f's[{b}:{b+n-1}]' if n>1 else f's{b}'

def build(kernels, launches=None, header=''):
    launches = launches or kernels
    out=header
    for k in launches:
        out+=f"; @launch kernel={k.name} grid=({k.grid},1,1) block=({k.block},1,1) lds={k.lds}\n"
    out+='.amdgcn_target "amdgcn-amd-amdhsa--gfx950"\n'
    ds=[]
    for k in kernels:
        t,d=k.text(); out+=t; ds.append(d)
    out+='.text\n.p2align 8\n.fill 256, 4, 0xBF800000\n'
    out+='.section .rodata,"a"\n'
    for d in ds: out+='.p2align 6\n'+d
    return out
```

```python
import sys, struct
from asmlib import *

def fhex(x): return '0x%08x' % struct.unpack('<I', struct.pack('<f', x))[0]
STAMP='--stamps' in sys.argv
def opt(name, default):
    for a in sys.argv:
        if a.startswith('--'+name+'='): return type(default)(a.split('=',1)[1])
    return default

WS_X1=0; WS_WP=0x480000; NYQ=0x400000
WS_SMALL=0xD00000
WS_ZN=0xD00000; WS_KEYS=0xD02000; WS_XS=0xD10000; WS_HDR=0xD18000
WS_P1=0; WS_P2=0x100000
WS_BYTES=0x1400000
A_X,A_WR,A_WI,A_BX,A_BWR,A_WG,A_WU,A_WD,A_OUT,A_DBG,A_WS=[8*i for i in range(11)]
KSH=opt('ksh',5)
SPIN=opt('spin',20000)
XNT=opt('xnt','nt'); WNT=opt('wnt','nt'); FNT=opt('fnt','nt')
OUTF=opt('outf','sc1'); X1F=opt('x1f','sc1'); WPF=opt('wpf',''); PFF=opt('pff','sc1')

def srd(k, argoff, nbytes):
    s=k.s(4)
    k.e(f's_load_dwordx2 {sr(s,2)}, s[0:1], {argoff}')
    k.e(f's_mov_b32 s{s+2}, {nbytes}')
    k.e(f's_mov_b32 s{s+3}, 0x00020000')
    return s
DPPS=('quad_perm:[1,0,3,2] row_mask:0xf bank_mask:0xf','quad_perm:[2,3,0,1] row_mask:0xf bank_mask:0xf',
      'row_half_mirror row_mask:0xf bank_mask:0xf','row_mirror row_mask:0xf bank_mask:0xf',
      'row_bcast:15 row_mask:0xa bank_mask:0xf','row_bcast:31 row_mask:0xc bank_mask:0xf')
def reduce_sum(k, regs):
    for ctl in DPPS:
        for r in regs: k.e(f'v_add_f32_dpp v{r}, v{r}, v{r} {ctl}')
def round_bf16(k, r):
    k.e(f'v_cvt_pk_bf16_f32 v{r}, v{r}, v{r}')
    k.e(f'v_and_b32 v{r}, 0xffff0000, v{r}')
def cmul(k, re, im, c, s, oa, ob, conj):
    e=k.e
    for h in (0,2):
        e(f'v_pk_mul_f32 {vr(oa+h,2)}, {vr(re+h,2)}, {vr(c+h,2)}')
        e(f'v_pk_mul_f32 {vr(ob+h,2)}, {vr(im+h,2)}, {vr(c+h,2)}')
    ng='neg_lo:[1,0,0] neg_hi:[1,0,0]'
    for h in (0,2):
        e(f'v_pk_fma_f32 {vr(oa+h,2)}, {vr(im+h,2)}, {vr(s+h,2)}, {vr(oa+h,2)} {"" if conj else ng}')
        e(f'v_pk_fma_f32 {vr(ob+h,2)}, {vr(re+h,2)}, {vr(s+h,2)}, {vr(ob+h,2)} {ng if conj else ""}')
def ln_scalar(k, a0, dl):
    e=k.e
    e(f'v_mul_f32 v{a0}, {fhex(1/1024)}, v{a0}')
    e(f'v_fma_f32 v{a0}, -v{dl}, v{dl}, v{a0}')
    round_bf16(k,a0)
    e(f'v_add_f32 v{a0}, {fhex(1e-5)}, v{a0}')
    round_bf16(k,a0)
    e(f'v_sqrt_f32 v{a0}, v{a0}')
    round_bf16(k,a0)

def k1():
    RP=528
    k=K('fft_rows_fwd_kernel',256,512,8*RP*4)
    e=k.e
    e('s_cmp_ge_u32 s2, 256'); e('s_cbranch_scc1 K1_EXIT'); k.stamp_init(0,STAMP)
    sx=srd(k,A_X,4194304); swr=srd(k,A_WR,2048*513*2); swi=srd(k,A_WI,2048*513*2); sw=srd(k,A_WS,WS_BYTES)
    sxc=k.s(); sy=k.s(); s0=k.s(); ssoff=k.s(); st=k.s(); swo=k.s(); sw_=k.s()
    n=k.v(); g=k.v(); w=k.v(); l=k.v(); voff=k.v(); t0=k.v(); t1=k.v(); woff=k.v(); wrow=k.v()
    e(f'''s_and_b32 s{sxc}, s2, 7
    s_lshr_b32 s{sy}, s2, 3
    s_lshl_b32 s{s0}, s{sxc}, 5
    s_add_u32 s{s0}, s{s0}, s{sy}
    v_and_b32 v{n}, 15, v0
    v_bfe_u32 v{g}, v0, 4, 2
    v_lshrrev_b32 v{w}, 6, v0
    v_lshlrev_b32 v{voff}, 19, v{w}
    v_lshl_or_b32 v{voff}, v{n}, 6, v{voff}
    v_lshl_or_b32 v{voff}, v{g}, 4, v{voff}
    s_lshl_b32 s{ssoff}, s{s0}, 11
    v_and_b32 v{l}, 63, v0
    v_mul_u32_u24 v{wrow}, 8208, v{w}
    v_lshl_add_u32 v{woff}, v{l}, 6, v{wrow}
    s_lshl_b32 s{swo}, s{sy}, 6
    s_add_u32 s{swo}, s{swo}, s{sxc}
    s_mul_i32 s{swo}, s{swo}, 1026
    s_waitcnt lgkmcnt(0)''')
    X=k.v(8); WL=k.v(12)
    e(f'buffer_load_dwordx4 {vr(X,4)}, v{voff}, {sr(sx,4)}, s{ssoff} offen {XNT}')
    e(f'buffer_load_dwordx4 {vr(X+4,4)}, v{voff}, {sr(sx,4)}, s{ssoff} offen offset:1024 {XNT}')
    M1=k.v(4,4); spf=k.s()
    NV=4
    k.stamp()
    e(f'v_readfirstlane_b32 s{sw_}, v{w}')
    Iu=k.v(8); ee=k.v(); val=k.v()
    e(f'''v_lshrrev_b32 v{ee}, 1, v{n}
    v_lshlrev_b32 v{t0}, 2, v{g}
    v_sub_u32 v{ee}, v{ee}, v{t0}
    v_and_b32 v{t1}, 1, v{n}
    v_lshlrev_b32 v{val}, 4, v{t1}
    v_mov_b32 v{Iu}, 0x3f80
    v_lshlrev_b32 v{val}, v{val}, v{Iu}''')
    sm=[k.s(2) for _ in range(4)]
    for u in range(2):
        for q in range(4): e(f'v_cmp_eq_u32 {sr(sm[q],2)}, {q-8*u}, v{ee}')
        for q in range(4): e(f'v_cndmask_b32 v{Iu+4*u+q}, 0, v{val}, {sr(sm[q],2)}')
    spc=k.s(2)
    e(f'''s_mov_b64 exec, 0x3ffff
    s_and_b32 s{swo}, s{swo}, 0xffffffc0
    buffer_load_dword v{WL}, v{woff}, {sr(swr,4)}, s{swo} offen {WNT}
    buffer_load_dword v{WL+1}, v{woff}, {sr(swi,4)}, s{swo} offen {WNT}
    s_mov_b64 exec, 0xffff
    s_getpc_b64 {sr(spc,2)}
    K1_PC:
    s_add_u32 s{spc}, s{spc}, fused_rest_kernel-K1_PC
    s_addc_u32 s{spc+1}, s{spc+1}, 0
    v_lshlrev_b32 v{WL+3}, 7, v{l}
    v_lshl_or_b32 v{WL+3}, v{w}, 11, v{WL+3}
    v_min_u32 v{WL+3}, KP_EXIT-fused_rest_kernel, v{WL+3}
    global_load_dword v{WL+2}, v{WL+3}, {sr(spc,2)}
    s_mov_b64 exec, -1''')
    fn=k.v(); fg=k.v(); sgn=k.v()
    e(f'''v_cvt_f32_u32 v{fn}, v{n}
    v_cvt_f32_u32 v{fg}, v{t0}
    v_mul_f32 v{fn}, {fhex(1/32)}, v{fn}
    v_mul_u32_u24 v{sgn}, 0x8000, v{t1}
    v_lshl_or_b32 v{sgn}, v{sgn}, 16, v{sgn}''')
    fb=k.v(8)
    for u in range(2):
        for r in range(4): e(f'v_add_f32 v{fb+4*u+r}, {fhex(16*u+r)}, v{fg}')
    FC0=k.v(4);FSn0=k.v(4);FSp0=k.v(4);FC1=k.v(4);FSn1=k.v(4)
    T=k.v(32)
    for r in range(4): e(f'v_mul_f32 v{T+r}, v{fn}, v{fb+r}')
    for r in range(4):
        e(f'v_cos_f32 v{T+4+r}, v{T+r}'); e(f'v_sin_f32 v{T+8+r}, v{T+r}')
    for q in range(2):
        e(f'v_cvt_pk_f16_f32 v{FC0+q}, v{T+4+2*q}, v{T+5+2*q}')
        e(f'v_cvt_pk_f16_f32 v{FSp0+q}, v{T+8+2*q}, v{T+9+2*q}')
    for q in range(2):
        e(f'v_xor_b32 v{FC0+2+q}, v{FC0+q}, v{sgn}')
        e(f'v_xor_b32 v{FSp0+2+q}, v{FSp0+q}, v{sgn}')
    for q in range(4):
        e(f'v_xor_b32 v{FSn0+q}, 0x80008000, v{FSp0+q}')
        e(f'v_xor_b32 v{FC1+q}, 0x80000000, v{FC0+q}')
        e(f'v_xor_b32 v{FSn1+q}, 0x00008000, v{FSp0+q}')
    TC=k.v(16); TS=k.v(16); fa=k.v(2)
    e(f'v_mul_f32 v{fa}, {fhex(1/32)}, v{fn}')
    e(f'v_add_f32 v{fa+1}, {fhex(16/1024)}, v{fa}')
    ti=lambda u,v,r: (u*2+v)*4+r
    for u in range(2):
        for v in range(2):
            for r in range(4): e(f'v_mul_f32 v{T+ti(u,v,r)}, v{fa+v}, v{fb+4*u+r}')
    for i in range(16):
        e(f'v_cos_f32 v{TC+i}, v{T+i}'); e(f'v_sin_f32 v{TS+i}, v{T+i}')
    R8=k.v(2)
    e(f'''v_lshrrev_b32 v{T}, 1, v{n}
    v_mul_u32_u24 v{T+1}, v{T}, v{g}
    v_lshl_add_u32 v{T+1}, v{t1}, 1, v{T+1}
    v_lshl_add_u32 v{T+2}, v{T}, 2, v{T+1}
    v_cvt_f32_u32 v{T+1}, v{T+1}
    v_cvt_f32_u32 v{T+2}, v{T+2}
    v_mul_f32 v{T+1}, {fhex(1/8)}, v{T+1}
    v_mul_f32 v{T+2}, {fhex(1/8)}, v{T+2}
    v_cos_f32 v{T+3}, v{T+1}
    v_sin_f32 v{T+4}, v{T+1}
    v_cos_f32 v{T+5}, v{T+2}
    v_sin_f32 v{T+6}, v{T+2}
    v_cvt_pk_f16_f32 v{R8}, v{T+3}, v{T+4}
    v_cvt_pk_f16_f32 v{R8+1}, v{T+5}, v{T+6}''')
    half0=k.v()
    e(f'''v_cmp_eq_u32 vcc, 0, v{l}
    v_mov_b32 v{half0}, 1.0
    v_mov_b32 v{T+1}, 0.5
    v_cndmask_b32 v{half0}, v{half0}, v{T+1}, vcc''')
    wa=k.v(); ra=k.v(4); so=k.v()
    e(f'''v_lshrrev_b32 v{T}, 2, v{n}
    v_and_b32 v{T+1}, 2, v{n}
    v_xor_b32 v{T}, v{T}, v{T+1}
    v_lshlrev_b32 v{T}, 4, v{T}
    v_and_b32 v{T+1}, 3, v{n}
    v_lshl_or_b32 v{T}, v{T+1}, 6, v{T}
    v_lshl_or_b32 v{T}, v{g}, 9, v{T}
    v_mul_u32_u24 v{wa}, {RP*4}, v{w}
    v_add_u32 v{wa}, v{wa}, v{T}
    v_and_b32 v{T}, 12, v{n}
    v_lshl_or_b32 v{T}, v{T+1}, 4, v{T}
    v_lshl_or_b32 v{T}, v{w}, 8, v{T}
    v_mul_u32_u24 v{T+2}, {RP*4}, v{g}
    v_add_u32 v{ra}, v{T}, v{T+2}
    v_add_u32 v{ra+1}, 64, v{ra}
    v_xor_b32 v{T}, 32, v{T}
    v_add_u32 v{T}, v{T}, v{T+2}
    v_add_u32 v{ra+2}, 128, v{T}
    v_add_u32 v{ra+3}, 192, v{T}''')
    nyra=k.v(); nyso=k.v(); wso=k.v(); wnso=k.v()
    e(f'''v_add_u32 v{nyra}, 2048, v{T+2}
    v_and_b32 v{T}, 1, v{w}
    v_lshrrev_b32 v{T+3}, 1, v{w}
    v_lshl_add_u32 v{T}, v{T+3}, 3, v{T}
    v_lshrrev_b32 v{T+3}, 2, v{n}
    v_lshl_add_u32 v{T}, v{T+3}, 1, v{T}
    v_lshl_add_u32 v{T}, v{g}, 6, v{T}
    v_lshlrev_b32 v{so}, 14, v{T}
    v_lshl_or_b32 v{so}, v{T+1}, 4, v{so}
    v_lshlrev_b32 v{nyso}, 15, v{g}
    v_lshlrev_b32 v{wnso}, 6, v{w}
    ''')
    sst=k.s(4,1); sws=k.s(3,1); sones=k.s(); sp0=k.s(); sp1=k.s()
    e(f'''s_lshl_b32 s{sst}, s{s0}, 6
    s_add_u32 s{sst+1}, s{sst}, {32*16384}
    s_add_u32 s{sst+2}, s{sst}, {NYQ}
    s_add_u32 s{sst+3}, s{sst}, {NYQ+16384}
    s_mov_b32 s{sones}, 0x3f803f80''')
    for i in range(4): e(f'v_mov_b32 v{M1+i}, -1')
    e(f'''s_lshl_b32 s{spf}, s2, 9
    s_add_u32 s{spf}, s{spf}, {WS_SMALL}
    v_lshl_add_u32 v{t0}, v{l}, 4, v{wnso}
    s_mov_b64 exec, 15
    buffer_store_dwordx4 {vr(M1,4)}, v{t0}, {sr(sw,4)}, s{spf} offen {PFF}
    s_mov_b64 exec, -1''')
    Dx=k.v(16); A=k.v(4); a0=A; a1=A+1; dl=k.v()
    k.stamp()
    e(f's_waitcnt vmcnt({NV+1})')
    k.stamp()
    for u in range(2): e(f'v_mfma_f32_16x16x32_bf16 {vr(Dx+4*u,4)}, {vr(X,4)}, {vr(Iu+4*u,4)}, 0')
    e(f'v_dot2_f32_bf16 v{a0}, v{X}, s{sones}, 0')
    for q in range(1,4): e(f'v_dot2_f32_bf16 v{a0}, v{X+q}, s{sones}, v{a0}')
    e(f's_waitcnt vmcnt({NV})')
    for u in range(2): e(f'v_mfma_f32_16x16x32_bf16 {vr(Dx+8+4*u,4)}, {vr(X+4,4)}, {vr(Iu+4*u,4)}, 0')
    for q in range(4,8): e(f'v_dot2_f32_bf16 v{a0}, v{X+q}, s{sones}, v{a0}')
    reduce_sum(k,[a0])
    smb=k.s(2); srs=k.s(2)
    e(f'v_mul_f32 v{a0}, {fhex(1/1024)}, v{a0}')
    e(f'v_cvt_pk_bf16_f32 v{a1}, v{a0}, v{a0}')
    e(f'v_and_b32 v{a1}, 0xffff0000, v{a1}')
    e(f'v_sub_f32 v{dl}, v{a0}, v{a1}')
    e(f'v_readlane_b32 s{smb}, v{a1}, 63')
    for i in range(0,16,2): e(f'v_pk_add_f32 {vr(Dx+i,2)}, {vr(Dx+i,2)}, {sr(smb,2)} op_sel_hi:[1,0] neg_lo:[0,1] neg_hi:[0,1]')
    e(f'v_pk_mul_f32 {vr(A,2)}, {vr(Dx,2)}, {vr(Dx,2)}'); e(f'v_pk_mul_f32 {vr(A+2,2)}, {vr(Dx+2,2)}, {vr(Dx+2,2)}')
    for i in range(4,16,2):
        a=A+(i&2); e(f'v_pk_fma_f32 {vr(a,2)}, {vr(Dx+i,2)}, {vr(Dx+i,2)}, {vr(a,2)}')
    e(f'v_pk_add_f32 {vr(A,2)}, {vr(A,2)}, {vr(A+2,2)}')
    e(f'v_add_f32 v{a0}, v{a0}, v{a1}')
    reduce_sum(k,[a0])
    ln_scalar(k,a0,dl)
    e(f'v_rcp_f32 v{a0}, v{a0}')
    e(f'v_readlane_b32 s{srs}, v{a0}, 63')
    opX=X
    Ti=lambda u,v,c: T+((u*2+v)*2+c)*4
    F=[[FC0,FSn0],[FC1,FSn1]]
    for u in range(2):
        for t in range(2):
            for q in range(2):
                d=Dx+8*t+4*u+2*q
                e(f'v_pk_mul_f32 {vr(d,2)}, {vr(d,2)}, {sr(srs,2)} op_sel_hi:[1,0]')
        for t in range(2):
            for q in range(2):
                d=Dx+8*t+4*u+2*q
                e(f'v_cvt_pk_f16_f32 v{opX+4*u+2*t+q}, v{d}, v{d+1}')
        if u==0: continue
    for v in range(2):
        for u in range(2):
            for c in range(2):
                e(f'v_mfma_f32_16x16x32_f16 {vr(Ti(u,v,c),4)}, {vr(opX+4*u,4)}, {vr(F[v][c],4)}, 0')
    opT=lambda v,c: Dx+(v*2+c)*4
    tmp=k.v(16); Vv=k.v(16); VN=k.v(4)
    Vi=lambda v,c: Vv+(v*2+c)*4
    for v in range(2):
        for u in range(2):
            oa=tmp+8*u; ob=oa+4
            cmul(k,Ti(u,v,0),Ti(u,v,1),TC+ti(u,v,0),TS+ti(u,v,0),oa,ob,True)
            for q in range(2):
                e(f'v_cvt_pk_f16_f32 v{opT(v,0)+2*u+q}, v{oa+2*q}, v{oa+2*q+1}')
                e(f'v_cvt_pk_f16_f32 v{opT(v,1)+2*u+q}, v{ob+2*q}, v{ob+2*q+1}')
        e(f'v_mfma_f32_16x16x32_f16 {vr(Vi(v,0),4)}, {vr(FC0,4)}, {vr(opT(v,0),4)}, 0')
        e(f'v_mfma_f32_16x16x32_f16 {vr(Vi(v,1),4)}, {vr(FC0,4)}, {vr(opT(v,1),4)}, 0')
        e(f'v_mfma_f32_16x16x32_f16 {vr(Vi(v,0),4)}, {vr(FSp0,4)}, {vr(opT(v,1),4)}, {vr(Vi(v,0),4)}')
        e(f'v_mfma_f32_16x16x32_f16 {vr(Vi(v,1),4)}, {vr(FSn0,4)}, {vr(opT(v,0),4)}, {vr(Vi(v,1),4)}')
        if v==0: e(f'v_mfma_f32_16x16x32_f16 {vr(VN,4)}, {vr(FC1,4)}, {vr(opT(0,0),4)}, 0')
    P=T
    e(f'v_mul_f32 v{Vi(0,0)}, v{Vi(0,0)}, v{half0}')
    e(f'v_mul_f32 v{VN}, 0.5, v{VN}')
    for r in range(4): e(f'v_cvt_pk_f16_f32 v{P+r}, v{Vi(0,0)+r}, v{Vi(0,1)+r}')
    e(f'v_cvt_pk_f16_f32 v{VN}, v{VN}, 0')
    e(f'ds_write_b128 v{wa}, {vr(P,4)}')
    e('s_mov_b64 exec, 1')
    e(f'ds_write_b32 v{wa}, v{VN} offset:2048')
    e('s_mov_b64 exec, -1')
    for r in range(4): e(f'v_cvt_pk_f16_f32 v{P+4+r}, v{Vi(1,0)+r}, v{Vi(1,1)+r}')
    e(f'ds_write_b128 v{wa}, {vr(P+4,4)} offset:256')
    k.stamp()
    e('s_waitcnt lgkmcnt(0)'); e('s_barrier')
    k.stamp()
    B=T+8; Dr=T+16; O=Dx
    for i in range(4): e(f'ds_read2st64_b32 {vr(B+2*i,2)}, v{ra+i} offset0:0 offset1:33')
    for i in range(4):
        e(f's_waitcnt lgkmcnt({3-i})')
        e(f'v_mfma_f32_16x16x16_f16 {vr(Dr+4*i,4)}, {vr(R8,2)}, {vr(B+2*i,2)}, 0')
    for u in range(2):
        for i in range(4): e(f'v_cvt_pk_f16_f32 v{O+4*u+i}, v{Dr+4*i+2*u}, v{Dr+4*i+2*u+1}')
        for i in (0,2): e(f'v_and_b32 v{O+4*u+i}, -2, v{O+4*u+i}')
        e(f'buffer_store_dwordx4 {vr(O+4*u,4)}, v{so}, {sr(sw,4)}, s{sst+u} offen {X1F}')
    k.stamp()
    e(f's_cmp_lg_u32 s{sw_}, 0'); e('s_cbranch_scc1 K1_END')
    e(f'ds_read2st64_b32 {vr(B,2)}, v{nyra} offset0:0 offset1:33')
    for i in range(8): e(f'v_mov_b32 v{Vv+i}, 0')
    e('s_waitcnt lgkmcnt(0)')
    e(f'v_mfma_f32_16x16x16_f16 {vr(Dr,4)}, {vr(R8,2)}, {vr(B,2)}, 0')
    e('s_mov_b32 exec_lo, 0x00010001'); e('s_mov_b32 exec_hi, 0x00010001')
    for u in range(2):
        e(f'v_cvt_pk_f16_f32 v{Vv+4*u+3}, v{Dr+2*u}, v{Dr+2*u+1}')
        e(f'buffer_store_dwordx4 {vr(Vv+4*u,4)}, v{nyso}, {sr(sw,4)}, s{sst+2+u} offen {X1F}')
    k.finish('K1',sw)
    return k

def kp():
    RP=576
    L_ZT=0; L_ROW=16384; L_GU=0
    L_W=16384; WCS=16512; WHS=8256
    L_KEY=49408; L_CNT=L_KEY+32; L_ACT=L_KEY+64
    k=K('fused_rest_kernel',256,512,L_ACT+8*144)
    e=k.e
    e('s_cmp_ge_u32 s2, 256'); e('s_cbranch_scc1 KP_EXIT'); k.stamp_init(1,STAMP)
    sw=srd(k,A_WS,WS_BYTES); sx=srd(k,A_X,4194304); sb=srd(k,A_BWR,2048); so_=srd(k,A_OUT,4194304)
    sd=srd(k,A_WD,3584*1024*2)
    swp=k.s(4); sW=k.s(4)
    e(f's_load_dwordx4 {sr(swp,4)}, s[0:1], {A_WR}')
    sgu=k.s(4); sgp=k.s(4)
    e(f's_load_dwordx4 {sr(sgp,4)}, s[0:1], {A_WG}')
    sxc=k.s(); sy=k.s(); s0=k.s(); sw_=k.s(); srole=k.s(); st=k.s(); st2=k.s(); sblk=k.s(); ssoff=k.s()
    sfb=k.s(); sq=k.s(); sgo=k.s(8,1); sit=k.s(); sm=k.s(2); sA=k.s(2); sB=k.s(2)
    n=k.v(); g=k.v(); w=k.v(); l=k.v(); t0=k.v(); t1=k.v(); t2=k.v(); voff=k.v(); boff=k.v(); xoff=k.v(); go=k.v()
    lo3=k.v(); krow=k.v(); zoff=k.v(); wa=k.v(); ra=k.v(); nra=k.v(); nwa=k.v(); nyf=k.v(); znoff=k.v()
    R8=k.v(2); NL=k.v(2); A=k.v(8)
    GU=k.v(32,4); LW=k.v(32,4); T=k.v(32,4); C=k.v(64,4); tmp=k.v(8,4); H=k.v(16,4); Wf=k.v(16,4); opT=k.v(16,4)
    L=LW; WL=LW+16; DW=LW; D=T; X=H+8; BW=Wf+8
    NBA=opt('nba',4); NBI0=opt('nbi0',0); NBI1=opt('nbi1',8); YLIM=opt('ylim',28)
    def emit_setup():
        e(f'''s_lshl_b32 s{ssoff}, s{s0}, 11
        v_lshl_or_b32 v{boff}, v{g}, 4, v{boff}
        v_lshl_or_b32 v{xoff}, v{w}, 19, v{boff}
        buffer_load_dwordx4 {vr(X,4)}, v{xoff}, {sr(sx,4)}, s{ssoff} offen
        buffer_load_dwordx4 {vr(X+4,4)}, v{xoff}, {sr(sx,4)}, s{ssoff} offen offset:1024
        buffer_load_dwordx4 {vr(BW,4)}, v{boff}, {sr(sb,4)}, 0 offen
        buffer_load_dwordx4 {vr(BW+4,4)}, v{boff}, {sr(sb,4)}, 0 offen offset:1024
        s_mul_i32 s{sfb}, s{sxc}, 7
        s_lshr_b32 s{st}, s{sy}, 2
        s_add_u32 s{sfb}, s{sfb}, s{st}
        s_and_b32 s{sq}, s{sy}, 3
        v_and_b32 v{lo3}, 7, v0
        v_bfe_u32 v{t0}, v0, 3, 1
        v_and_b32 v{krow}, 3, v{w}
        v_lshlrev_b32 v{krow}, 6, v{krow}
        v_lshl_or_b32 v{krow}, v{t0}, 5, v{krow}
        v_lshl_or_b32 v{krow}, v{g}, 3, v{krow}
        v_mul_u32_u24 v{go}, 7168, v{krow}
        v_lshl_add_u32 v{go}, v{lo3}, 4, v{go}
        s_mul_i32 s{sgo}, s{sq}, {256*7168}
        s_lshl_b32 s{st}, s{sfb}, 7
        s_add_u32 s{sgo}, s{sgo}, s{st}
        s_cmp_ge_u32 s{sy}, {YLIM}
        s_cselect_b32 s{sgo}, 0x40000000, s{sgo}
        s_cmp_ge_u32 s{sw_}, 4
        s_cselect_b32 s{sgu}, s{sgp+2}, s{sgp}
        s_cselect_b32 s{sgu+1}, s{sgp+3}, s{sgp+1}
        s_mov_b32 s{sgu+2}, {1024*3584*2}
        s_mov_b32 s{sgu+3}, 0x00020000''')
        for i in range(1,8): e(f's_add_u32 s{sgo+i}, s{sgo}, {i*7168}')
    def emit_gu(a,b):
        for i in range(a,b): e(f'buffer_load_dwordx4 {vr(GU+4*i,4)}, v{go}, {sr(sgu,4)}, s{sgo+i} offen {FNT}')
    NOP_=LW+16; NW=LW+20
    e(f'''v_lshrrev_b32 v{w}, 6, v0
    v_and_b32 v{n}, 15, v0
    v_readfirstlane_b32 s{sw_}, v{w}
    v_bfe_u32 v{g}, v0, 4, 2
    s_and_b32 s{sxc}, s2, 7
    s_lshr_b32 s{sy}, s2, 3
    v_lshlrev_b32 v{boff}, 6, v{n}
    v_lshl_or_b32 v{voff}, v{g}, 12, v{boff}
    s_lshl_b32 s{s0}, s{sxc}, 5
    s_add_u32 s{s0}, s{s0}, s{sy}
    s_lshl_b32 s{sblk}, s{s0}, 14
    s_lshl_b32 s{st}, s{sw_}, 4
    s_add_u32 s{sblk}, s{sblk}, s{st}
    v_and_b32 v{l}, 63, v0
    s_mov_b32 s{srole}, 1
    s_cmp_ge_u32 s{sw_}, 4
    s_cbranch_scc1 KP_WDUTY
    s_waitcnt lgkmcnt(0)''')
    for i in range(4): e(f'buffer_load_dwordx4 {vr(L+4*i,4)}, v{voff}, {sr(sw,4)}, s{sblk} offen offset:{1024*i}')
    emit_setup()
    e('s_branch KP_K2C')
    e('KP_WDUTY:')
    e(f'''v_bfe_u32 v{t0}, v0, 1, 4
    v_bfe_u32 v{t1}, v0, 5, 1
    v_and_b32 v{t2}, 2, v{w}
    v_add_u32 v{t1}, v{t1}, v{t2}
    v_lshl_add_u32 v{t2}, v{t1}, 6, v{t0}
    v_mul_u32_u24 v{zoff}, 8208, v{t2}
    v_and_b32 v{t2}, 1, v0
    v_lshl_add_u32 v{zoff}, v{t2}, 4, v{zoff}
    s_mul_i32 s{sgo}, s{sxc}, 1026
    s_lshl_b32 s{st}, s{sy}, 5
    s_add_u32 s{sgo+4}, s{sgo}, s{st}
    s_add_u32 s{sgo+5}, s{sgo+4}, {16*8208}
    s_add_u32 s{sgo+6}, s{sgo+4}, {32*8208}
    s_add_u32 s{sgo+7}, s{sgo+4}, {48*8208}
    s_bitcmp1_b32 s{sw_}, 0
    s_mov_b32 s{sW+2}, {2048*513*2+4}
    s_mov_b32 s{sW+3}, 0x00020000
    s_waitcnt lgkmcnt(0)
    s_cselect_b32 s{sW}, s{swp+2}, s{swp}
    s_cselect_b32 s{sW+1}, s{swp+3}, s{swp+1}''')
    for r in range(4): e(f'buffer_load_dwordx4 {vr(L+4*r,4)}, v{zoff}, {sr(sW,4)}, s{sgo+4+r} offen')
    e(f'''v_lshl_add_u32 v{wa}, v{t1}, 4, v{t0}
    v_lshlrev_b32 v{wa}, 4, v{wa}
    v_mul_u32_u24 v{t2}, {WHS}, v{t2}
    v_add_u32 v{wa}, v{wa}, v{t2}
    v_and_b32 v{t2}, 1, v{w}
    v_mul_u32_u24 v{t2}, {WCS}, v{t2}
    v_add_u32 v{wa}, v{wa}, v{t2}
    s_mov_b32 s{srole}, 0
    s_lshl_b32 s{st}, s{sy}, 3
    s_or_b32 s{st}, s{st}, s{sw_}
    s_cmp_lg_u32 s{st}, 4
    s_cbranch_scc1 KP_IDLE1
    s_mov_b32 s{srole}, 2
    s_lshl_b32 s{sblk}, s{sxc}, 14
    s_add_u32 s{sblk}, s{sblk}, {NYQ+12}
    v_lshl_add_u32 v{t0}, v{g}, 6, v{n}
    v_mul_u32_u24 v{t0}, 8208, v{t0}
    s_add_u32 s{sgo+1}, s{sgo}, {16*8208}
    s_add_u32 s{sgo+2}, s{sgo}, {32*8208}
    s_add_u32 s{sgo+3}, s{sgo}, {48*8208}''')
    for i in range(4): e(f'buffer_load_dword v{NOP_+i}, v{voff}, {sr(sw,4)}, s{sblk} offen offset:{1024*i}')
    for r in range(4): e(f'buffer_load_ushort v{NW+r}, v{t0}, {sr(sW,4)}, s{sgo+r} offen offset:1024')
    e(f's_mov_b32 s{sW}, s{swp+2}'); e(f's_mov_b32 s{sW+1}, s{swp+3}')
    for r in range(4): e(f'buffer_load_ushort v{NW+4+r}, v{t0}, {sr(sW,4)}, s{sgo+r} offen offset:1024')
    e('KP_K2C:')
    M1re,M1im,M2re,M2im,M3re,M3im,M4re,M4im=[C+4*i for i in range(8)]
    T1c,T1s,T3c,T3s=[C+32+4*i for i in range(4)]
    fq=C+48; fqj=C+52; Cc=C+56; Sn=C+60; AR=tmp; fn=tmp+4; fnj=tmp+5
    e(f'''v_lshlrev_b32 v{t1}, 2, v{g}
    v_cvt_f32_u32 v{fq}, v{t1}
    v_cvt_f32_u32 v{fn}, v{n}
    v_lshl_add_u32 v{t0}, v{n}, 3, s{sxc}
    v_cvt_f32_u32 v{fnj}, v{t0}
    v_cvt_f32_u32 v{t0}, s{sxc}''')
    for r in range(1,4): e(f'v_add_f32 v{fq+r}, {fhex(r)}, v{fq}')
    e(f's_mov_b32 s{st}, {fhex(8.0)}')
    for r in range(4): e(f'v_fma_f32 v{fqj+r}, v{fq+r}, s{st}, v{t0}')
    def sincos(fx, fy4, scale, Cd, Sd):
        e(f'v_mul_f32 v{t1}, {fhex(scale)}, v{fx}')
        for r in range(4): e(f'v_mul_f32 v{AR+r}, v{t1}, v{fy4+r}')
        for r in range(4):
            e(f'v_cos_f32 v{Cd+r}, v{AR+r}'); e(f'v_sin_f32 v{Sd+r}, v{AR+r}')
    sincos(fnj,fq,1/128,Cc,Sn)
    for r in range(4):
        e(f'v_cvt_pk_f16_f32 v{M1re+r}, v{Cc+r}, v{Sn+r}'); e(f'v_cvt_pk_f16_f32 v{M1im+r}, -v{Sn+r}, v{Cc+r}')
    sincos(fnj,fq,1/2048,T1c,T1s)
    for r in range(8): e(f'v_mul_f32 v{T1c+r}, {fhex(1/16)}, v{T1c+r}')
    sincos(fn,fq,1/16,Cc,Sn)
    for r in range(4):
        e(f'v_cvt_pk_f16_f32 v{M2re+r}, v{Cc+r}, v{Sn+r}'); e(f'v_cvt_pk_f16_f32 v{M2im+r}, -v{Sn+r}, v{Cc+r}')
        e(f'v_cvt_pk_bf16_f32 v{M3re+r}, v{Cc+r}, -v{Sn+r}'); e(f'v_cvt_pk_bf16_f32 v{M3im+r}, v{Sn+r}, v{Cc+r}')
    sincos(fn,fqj,1/2048,T3c,T3s)
    for r in range(8): e(f'v_mul_f32 v{T3c+r}, {fhex(2.0**-16)}, v{T3c+r}')
    sincos(fn,fqj,1/128,Cc,Sn)
    for r in range(4):
        e(f'v_cvt_pk_bf16_f32 v{M4re+r}, v{Cc+r}, -v{Sn+r}'); e(f'v_cvt_pk_bf16_f32 v{M4im+r}, v{Sn+r}, v{Cc+r}')
    Di=lambda p,c: D+(p*2+c)*4
    op=lambda p: L+4*p
    WUp=[C+48,C+56,WL,WL+8]
    tm=[tmp,opT]
    e(f's_cmp_eq_u32 s{srole}, 1'); e('s_cbranch_scc1 KP_K2MATH')
    e('KP_IDLE1:')
    emit_setup(); emit_gu(0,NBI0)
    k.stamp(2)
    e(f's_waitcnt vmcnt({4+NBI0})')
    k.stamp(3)
    for kk in range(8):
        d=T+4*kk
        for r in range(4):
            src=L+4*r+(kk>>1)
            e(f'v_and_b32 v{d+r}, 0xffff0000, v{src}' if kk&1 else f'v_lshlrev_b32 v{d+r}, 16, v{src}')
        e(f'ds_write_b128 v{wa}, {vr(d,4)} offset:{L_W+1024*kk}')
    e('s_waitcnt lgkmcnt(0)'); e('s_barrier')
    e(f's_waitcnt vmcnt({NBI0})')
    emit_gu(NBI0,NBI1)
    k.stamp(1)
    e(f's_cmp_eq_u32 s{srole}, 0'); e('s_cbranch_scc1 KP_CONSTS')
    oa=tmp; ob=tmp+4
    for i in range(8): e(f'v_lshlrev_b32 v{NW+i}, 16, v{NW+i}')
    e(f'v_mfma_f32_16x16x32_f16 {vr(D,4)}, {vr(NOP_,4)}, {vr(M1re,4)}, 0')
    e(f'v_mfma_f32_16x16x32_f16 {vr(D+4,4)}, {vr(NOP_,4)}, {vr(M1im,4)}, 0')
    cmul(k,D,D+4,T1c,T1s,oa,ob,True)
    for r in range(4): e(f'v_cvt_pk_f16_f32 v{NOP_+r}, v{oa+r}, v{ob+r}')
    e(f'v_mfma_f32_16x16x32_f16 {vr(D,4)}, {vr(M2re,4)}, {vr(NOP_,4)}, 0')
    e(f'v_mfma_f32_16x16x32_f16 {vr(D+4,4)}, {vr(M2im,4)}, {vr(NOP_,4)}, 0')
    cmul(k,D,D+4,NW,NW+4,oa,ob,False)
    for r in range(4): e(f'v_cvt_pk_bf16_f32 v{NOP_+r}, v{oa+r}, v{ob+r}')
    e(f'v_mfma_f32_16x16x32_bf16 {vr(D,4)}, {vr(NOP_,4)}, {vr(M3re,4)}, 0')
    e(f'v_mfma_f32_16x16x32_bf16 {vr(D+4,4)}, {vr(NOP_,4)}, {vr(M3im,4)}, 0')
    cmul(k,D,D+4,T3c,T3s,oa,ob,False)
    for r in range(4): e(f'v_cvt_pk_bf16_f32 v{NOP_+r}, v{oa+r}, v{ob+r}')
    e(f'v_mfma_f32_16x16x32_bf16 {vr(D,4)}, {vr(M4re,4)}, {vr(NOP_,4)}, 0')
    e(f'v_mfma_f32_16x16x32_bf16 {vr(D+4,4)}, {vr(M4im,4)}, {vr(NOP_,4)}, 0')
    e(f'''v_lshlrev_b32 v{t0}, 4, v{l}
    s_lshl_b32 s{st}, s{sxc}, 10
    s_add_u32 s{st}, s{st}, {WS_ZN}''')
    for r in range(4): e(f'v_cvt_pk_bf16_f32 v{NOP_+r}, v{D+r}, v{D+4+r}')
    e(f'buffer_store_dwordx4 {vr(NOP_,4)}, v{t0}, {sr(sw,4)}, s{st} offen sc1')
    e('s_branch KP_SYNCA')
    e('KP_K2MATH:')
    e(f'''v_bfe_u32 v{t0}, v{n}, 1, 2
    v_xor_b32 v{t0}, v{t0}, v{w}
    v_lshl_or_b32 v{t2}, v{t0}, 4, v{voff}
    v_lshrrev_b32 v{t0}, 1, v{w}
    v_mul_u32_u24 v{t1}, {WHS}, v{t0}
    v_and_b32 v{t0}, 1, v{w}
    v_lshl_add_u32 v{t1}, v{t0}, 12, v{t1}
    v_lshl_add_u32 v{t1}, v{l}, 4, v{t1}''')
    k.stamp(2)
    e('s_waitcnt vmcnt(4)')
    k.stamp(3)
    for i in range(4):
        for p in range(i+1,4): e(f'v_swap_b32 v{L+4*i+p}, v{L+4*p+i}')
        e(f'v_mfma_f32_16x16x32_f16 {vr(Di(i,0),4)}, {vr(op(i),4)}, {vr(M1re,4)}, 0')
        e(f'v_mfma_f32_16x16x32_f16 {vr(Di(i,1),4)}, {vr(op(i),4)}, {vr(M1im,4)}, 0')
    for p in range(4):
        oa=tm[p&1]; ob=oa+4
        cmul(k,Di(p,0),Di(p,1),T1c,T1s,oa,ob,True)
        for r in range(4): e(f'v_cvt_pk_f16_f32 v{op(p)+r}, v{oa+r}, v{ob+r}')
        if p==3:
            e('s_waitcnt vmcnt(0)')
            e('s_barrier')
            for pp in range(4):
                for c in range(2): e(f'ds_read_b128 {vr(WUp[pp]+4*c,4)}, v{t1} offset:{L_W+c*WCS+1024*pp}')
        e(f'v_mfma_f32_16x16x32_f16 {vr(Di(p,0),4)}, {vr(M2re,4)}, {vr(op(p),4)}, 0')
        e(f'v_mfma_f32_16x16x32_f16 {vr(Di(p,1),4)}, {vr(M2im,4)}, {vr(op(p),4)}, 0')
    emit_gu(0,NBA)
    k.stamp(1)
    for p in range(4):
        oa=tm[p&1]; ob=oa+4
        e(f's_waitcnt lgkmcnt({6-2*p})')
        cmul(k,Di(p,0),Di(p,1),WUp[p],WUp[p]+4,oa,ob,False)
        for r in range(4): e(f'v_cvt_pk_bf16_f32 v{op(p)+r}, v{oa+r}, v{ob+r}')
        e(f'v_mfma_f32_16x16x32_bf16 {vr(Di(p,0),4)}, {vr(op(p),4)}, {vr(M3re,4)}, 0')
        e(f'v_mfma_f32_16x16x32_bf16 {vr(Di(p,1),4)}, {vr(op(p),4)}, {vr(M3im,4)}, 0')
    for p in range(4):
        oa=tm[p&1]; ob=oa+4
        cmul(k,Di(p,0),Di(p,1),T3c,T3s,oa,ob,False)
        for r in range(4): e(f'v_cvt_pk_bf16_f32 v{op(p)+r}, v{oa+r}, v{ob+r}')
        e(f'v_mfma_f32_16x16x32_bf16 {vr(Di(p,0),4)}, {vr(M4re,4)}, {vr(op(p),4)}, 0')
        e(f'v_mfma_f32_16x16x32_bf16 {vr(Di(p,1),4)}, {vr(M4im,4)}, {vr(op(p),4)}, 0')
    O=WL
    for p in range(4):
        for r in range(4): e(f'v_cvt_pk_bf16_f32 v{O+4*r+p}, v{Di(p,0)+r}, v{Di(p,1)+r}')
    for r in range(4): e(f'ds_write_b128 v{t2}, {vr(O+4*r,4)} offset:{L_ZT+1024*r}')
    e('KP_SYNCA:')
    ZS=tmp
    e(f'''v_lshlrev_b32 v{t0}, 4, v{l}
    v_lshl_or_b32 v{t0}, v{w}, 11, v{t0}
    v_lshrrev_b32 v{t1}, 3, v{l}
    v_xor_b32 v{t1}, v{t1}, v{l}
    v_and_b32 v{t1}, 3, v{t1}
    v_lshlrev_b32 v{t1}, 4, v{t1}
    v_and_b32 v{t2}, 0xffffffc0, v{t0}
    v_or_b32 v{t1}, v{t1}, v{t2}
    s_lshl_b32 s{st}, s{s0}, 14''')
    k.stamp(4)
    e('s_waitcnt lgkmcnt(0)'); e('s_barrier')
    e(f'ds_read_b128 {vr(ZS,4)}, v{t0} offset:{L_ZT}')
    e(f'ds_read_b128 {vr(ZS+4,4)}, v{t0} offset:{L_ZT+1024}')
    e('s_waitcnt lgkmcnt(1)')
    e(f'v_or_b32 v{ZS}, 1, v{ZS}'); e(f'v_or_b32 v{ZS+2}, 1, v{ZS+2}')
    e(f'buffer_store_dwordx4 {vr(ZS,4)}, v{t1}, {sr(sw,4)}, s{st} offen sc1')
    e('s_waitcnt lgkmcnt(0)')
    e(f'v_or_b32 v{ZS+4}, 1, v{ZS+4}'); e(f'v_or_b32 v{ZS+6}, 1, v{ZS+6}')
    e(f'buffer_store_dwordx4 {vr(ZS+4,4)}, v{t1}, {sr(sw,4)}, s{st} offen offset:1024 sc1')
    k.stamp(5)
    e(f's_cmp_eq_u32 s{srole}, 0'); e('s_cbranch_scc1 KP_PREPOLL')
    e('KP_CONSTS:')
    IA=C; IB=C+16; TC=C+32; TS=C+48
    IAi=lambda u,c: IA+(u*2+c)*4
    IBi=lambda t,v: IB+(t*2+v)*4
    ti=lambda u,v,r:(u*2+v)*4+r
    par=A; fb=A+2; fn3=A+4; sgn=A+5; fq3=opT
    e(f'''v_and_b32 v{par}, 1, v{n}
    v_lshrrev_b32 v{T}, 1, v{n}
    v_mul_u32_u24 v{T+1}, v{T}, v{g}
    v_sub_u32 v{T+1}, v{par}, v{T+1}
    v_lshlrev_b32 v{T+1}, 1, v{T+1}
    v_sub_u32 v{T+2}, v{T+1}, v{T}
    v_cvt_f32_i32 v{T+1}, v{T+1}
    v_cvt_f32_i32 v{T+2}, v{T+2}
    v_mul_f32 v{T+1}, {fhex(1/8)}, v{T+1}
    v_mul_f32 v{T+2}, {fhex(1/8)}, v{T+2}
    v_cos_f32 v{T+3}, v{T+1}
    v_sin_f32 v{T+4}, v{T+1}
    v_cos_f32 v{T+5}, v{T+2}
    v_sin_f32 v{T+6}, v{T+2}
    v_cvt_pk_bf16_f32 v{R8}, v{T+3}, v{T+4}
    v_cvt_pk_bf16_f32 v{R8+1}, v{T+5}, v{T+6}
    v_lshrrev_b32 v{T}, 1, v{w}
    v_lshlrev_b32 v{T}, 6, v{T}
    v_lshlrev_b32 v{zoff}, 4, v{n}
    v_lshl_or_b32 v{zoff}, v{w}, 8, v{zoff}
    v_add_u32 v{T}, v{T}, v{zoff}
    v_lshrrev_b32 v{zoff}, 2, v{n}
    v_lshl_add_u32 v{zoff}, v{w}, 2, v{zoff}
    v_lshl_add_u32 v{zoff}, v{g}, 6, v{zoff}
    v_lshlrev_b32 v{zoff}, 14, v{zoff}
    v_and_b32 v{znoff}, 3, v{n}
    v_lshl_or_b32 v{zoff}, v{znoff}, 4, v{zoff}
    v_lshlrev_b32 v{znoff}, 11, v{g}
    v_mul_u32_u24 v{nwa}, {2*RP*4}, v{g}
    v_add_u32 v{wa}, v{T}, v{nwa}
    v_mul_u32_u24 v{nra}, {RP*4}, v{w}
    v_mul_u32_u24 v{T}, {144*4}, v{g}
    v_lshl_add_u32 v{T}, v{n}, 2, v{T}
    v_add_u32 v{ra}, v{T}, v{nra}
    v_add_u32 v{ra}, {L_ROW}, v{ra}
    v_lshlrev_b32 v{T}, 2, v{g}
    v_cvt_f32_u32 v{T}, v{T}
    v_and_b32 v{T+1}, 12, v{n}
    v_add_u32 v{T+1}, v{T+1}, v{n}
    v_cvt_f32_u32 v{fb}, v{T+1}
    v_mul_f32 v{fb}, {fhex(1/32)}, v{fb}
    v_add_f32 v{fb+1}, {fhex(4/32)}, v{fb}
    v_cvt_f32_u32 v{fn3}, v{n}
    v_mul_f32 v{fn3}, {fhex(1/32)}, v{fn3}
    v_mul_u32_u24 v{sgn}, 0x8000, v{par}
    v_lshl_or_b32 v{sgn}, v{sgn}, 16, v{sgn}
    v_lshlrev_b32 v{nyf}, 31, v{par}
    v_or_b32 v{nyf}, 1.0, v{nyf}
    v_cmp_eq_u32 vcc, 0, v{g}
    v_cndmask_b32 v{nyf}, 0, v{nyf}, vcc''')
    for v in range(2):
        for r in range(4): e(f'v_add_f32 v{fq3+4*v+r}, {fhex(16*v+r)}, v{T}')
    for u in range(2):
        for r in range(4): e(f'v_mul_f32 v{T+4*u+r}, v{fb+u}, v{fq3+r}')
    for r in range(4): e(f'v_mul_f32 v{T+8+r}, v{fn3}, v{fq3+r}')
    for i in range(12):
        e(f'v_cos_f32 v{T+12+i}, v{T+i}'); e(f'v_sin_f32 v{T+i}, v{T+i}')
    for u in range(2):
        for r in range(4):
            e(f'v_cvt_pk_bf16_f32 v{IAi(u,0)+r}, v{T+12+4*u+r}, -v{T+4*u+r}')
            e(f'v_cvt_pk_bf16_f32 v{IAi(u,1)+r}, v{T+4*u+r}, v{T+12+4*u+r}')
    for r in range(4): e(f'v_cvt_pk_bf16_f32 v{IBi(0,0)+r}, v{T+20+r}, -v{T+8+r}')
    for r in range(4): e(f'v_xor_b32 v{IBi(0,1)+r}, v{IBi(0,0)+r}, v{sgn}')
    for v in range(2):
        for r in range(4):
            if r&1: e(f'v_xor_b32 v{IBi(1,v)+r}, 0x80008000, v{IBi(0,v)+r}')
            else:   e(f'v_mov_b32 v{IBi(1,v)+r}, v{IBi(0,v)+r}')
    for u in range(2): e(f'v_mul_f32 v{fb+u}, {fhex(1/32)}, v{fb+u}')
    for u in range(2):
        for v in range(2):
            for r in range(4): e(f'v_mul_f32 v{T+ti(u,v,r)}, v{fb+u}, v{fq3+4*v+r}')
    for i in range(16):
        e(f'v_cos_f32 v{TC+i}, v{T+i}'); e(f'v_sin_f32 v{TS+i}, v{T+i}')
    for (dst,src) in ((H,X),(Wf,BW)):
        for q in range(8):
            e(f'v_lshlrev_b32 v{dst+2*q}, 16, v{src+q}'); e(f'v_and_b32 v{dst+2*q+1}, 0xffff0000, v{src+q}')
    e(f'''v_mov_b32 v{T}, 0
    v_lshlrev_b32 v{T+1}, 2, v{lo3}
    ds_write_b32 v{T+1}, v{T} offset:{L_CNT}''')
    e(f's_cmp_eq_u32 s{srole}, 0'); e('s_cbranch_scc1 KP_SYNCA')
    e('s_branch KP_POLL')
    e('KP_PREPOLL:')
    e(f's_sleep {opt("zsleep",16)}')
    e('KP_POLL:')
    ZL=opT; B=opT+8
    szn=sB
    e(f'''s_lshl_b32 s{sA}, s{s0}, 6
    s_add_u32 s{sA+1}, s{sA}, {32*16384}
    s_lshr_b32 s{st}, s{s0}, 6
    s_lshl_b32 s{st}, s{st}, 8
    s_and_b32 s{st2}, s{s0}, 15
    s_lshl_b32 s{st2}, s{st2}, 4
    s_add_u32 s{st}, s{st}, s{st2}
    s_bfe_u32 s{st2}, s{s0}, 0x20004
    s_lshl_b32 s{st2}, s{st2}, 2
    s_add_u32 s{st}, s{st}, s{st2}
    s_add_u32 s{szn}, s{st}, {WS_ZN}
    v_mov_b32 v{NL}, 0
    v_mov_b32 v{NL+1}, 0
    s_mov_b32 s{sit}, 0
    s_mov_b64 {sr(sm,2)}, -1''')
    k.stamp(6)
    e(f'''KP_ZLOOP:
    s_mov_b64 exec, {sr(sm,2)}
    buffer_load_dwordx4 {vr(ZL,4)}, v{zoff}, {sr(sw,4)}, s{sA} offen sc1
    buffer_load_dwordx4 {vr(ZL+4,4)}, v{zoff}, {sr(sw,4)}, s{sA+1} offen sc1
    s_cmp_lg_u32 s{sw_}, 7
    s_cbranch_scc1 KP_ZL2
    buffer_load_dword v{NL}, v{znoff}, {sr(sw,4)}, s{szn} offen sc1
    buffer_load_dword v{NL+1}, v{znoff}, {sr(sw,4)}, s{szn} offen offset:1024 sc1
    KP_ZL2:
    s_mov_b64 exec, -1
    s_add_u32 s{sit}, s{sit}, 1
    s_waitcnt vmcnt(0)
    v_bitop3_b32 v{t0}, v{ZL}, v{ZL+2}, v{ZL+4} bitop3:0x80
    v_max_u32 v{t1}, v{NL}, v{NL+1}
    v_bitop3_b32 v{t0}, v{t0}, v{ZL+6}, 1 bitop3:0x80
    v_cmp_eq_u32 vcc, -1, v{t1}
    v_cmp_eq_u32 {sr(sm,2)}, 0, v{t0}
    s_cmp_gt_u32 s{sit}, {SPIN}
    s_cbranch_scc1 KP_ZDONE
    s_or_b64 {sr(sm,2)}, {sr(sm,2)}, vcc
    s_cbranch_scc1 KP_ZLOOP
    KP_ZDONE:''')
    k.stamp(7)
    Dr=T; O3=T+20
    for p in range(4):
        e(f'v_mov_b32 v{B+2*p}, v{ZL+p}'); e(f'v_mov_b32 v{B+2*p+1}, v{ZL+4+p}')
    for p in range(4): e(f'v_mfma_f32_16x16x16_bf16 {vr(Dr+4*p,4)}, {vr(R8,2)}, {vr(B+2*p,2)}, 0')
    e(f'v_mfma_f32_16x16x16_bf16 {vr(Dr+16,4)}, {vr(R8,2)}, {vr(NL,2)}, 0')
    do=go
    e(f'''s_cmp_lt_u32 s{sw_}, 4
    s_cbranch_scc1 KP_NODW''')
    emit_gu(NBI1,8)
    e(f'''v_lshlrev_b32 v{do}, 14, v{g}
    v_lshl_or_b32 v{do}, v{n}, 3, v{do}
    s_lshl_b32 s{sgo}, s{sfb}, 17
    s_lshl_b32 s{st}, s{sq}, 9
    s_add_u32 s{sgo}, s{sgo}, s{st}
    s_lshl_b32 s{st}, s{sw_}, 7
    s_add_u32 s{sgo}, s{sgo}, s{st}
    s_sub_u32 s{sgo}, s{sgo}, 512
    s_cmp_ge_u32 s{sy}, {YLIM}
    s_cselect_b32 s{sgo}, 0x40000000, s{sgo}''')
    for i in range(1,8): e(f's_add_u32 s{sgo+i}, s{sgo}, {((i>>2)*32+(i&3)*2)*2048}')
    for ee in range(2):
        for i in range(8):
            e(f'buffer_load_dwordx2 {vr(DW+16*ee+2*i,2)}, v{do}, {sr(sd,4)}, s{sgo+4*ee+(i>>1)} offen offset:{2048*(i&1)} {FNT}')
    e('s_branch KP_DWDONE')
    e('KP_NODW:')
    emit_gu(NBA,8)
    e('KP_DWDONE:')
    e('s_nop 4')
    for u in range(2):
        for p in range(4): e(f'v_cvt_pk_bf16_f32 v{O3+4*u+p}, v{Dr+4*p+2*u}, v{Dr+4*p+2*u+1}')
        e(f'ds_write_b128 v{wa}, {vr(O3+4*u,4)} offset:{L_ROW+u*RP*4}')
    e(f'''s_cmp_lg_u32 s{sw_}, 7
    s_cbranch_scc1 KP_NONY
    ds_write_b32 v{nwa}, v{Dr+16} offset:{L_ROW+128*4}
    ds_write_b32 v{nwa}, v{Dr+18} offset:{L_ROW+128*4+RP*4}
    KP_NONY:''')
    e('s_waitcnt lgkmcnt(0)'); e('s_barrier')
    opU=B; UN=NL
    for v in range(2):
        e(f'ds_read2_b32 {vr(opU+4*v,2)}, v{ra} offset0:{16*v} offset1:{16*v+32}')
        e(f'ds_read2_b32 {vr(opU+4*v+2,2)}, v{ra} offset0:{16*v+64} offset1:{16*v+96}')
    e(f'ds_read_b32 v{UN}, v{nra} offset:{L_ROW+128*4}')
    Ti=lambda u,v,c: T+((u*2+v)*2+c)*4
    for v in range(2):
        e(f's_waitcnt lgkmcnt({3-2*v})')
        for u in range(2):
            for c in range(2):
                e(f'v_mfma_f32_16x16x32_bf16 {vr(Ti(u,v,c),4)}, {vr(opU+4*v,4)}, {vr(IAi(u,c),4)}, 0')
    e('s_waitcnt lgkmcnt(0)')
    for u in range(2): e(f'v_fmac_f32 v{Ti(u,0,0)}, v{nyf}, v{UN}')
    oT=lambda u,v: opT+(v*2+u)*4
    Hi=lambda t,u: H+(t*2+u)*4
    tm3=[tmp,A]
    for v in range(2):
        for u in range(2):
            oa=tm3[u]; ob=oa+4
            cmul(k,Ti(u,v,0),Ti(u,v,1),TC+ti(u,v,0),TS+ti(u,v,0),oa,ob,False)
            for r in range(4): e(f'v_cvt_pk_bf16_f32 v{oT(u,v)+r}, v{oa+r}, v{ob+r}')
            for t in range(2):
                e(f'v_mfma_f32_16x16x32_bf16 {vr(Hi(t,u),4)}, {vr(oT(u,v),4)}, {vr(IBi(t,v),4)}, {vr(Hi(t,u),4)}')
    a0=A; a1=A+1; a2=A+4; dl=t2; mb=t1
    smb=sA; srs=sB
    order=[0,2,8,10,4,6,12,14]
    e(f'v_pk_add_f32 {vr(A,2)}, {vr(H+0,2)}, {vr(H+2,2)}'); e(f'v_pk_add_f32 {vr(A+2,2)}, {vr(H+8,2)}, {vr(H+10,2)}')
    e(f'v_pk_add_f32 {vr(A,2)}, {vr(A,2)}, {vr(A+2,2)}')
    e(f'v_pk_add_f32 {vr(A+2,2)}, {vr(H+4,2)}, {vr(H+6,2)}'); e(f'v_pk_add_f32 {vr(A+4,2)}, {vr(H+12,2)}, {vr(H+14,2)}')
    e(f'v_pk_add_f32 {vr(A+2,2)}, {vr(A+2,2)}, {vr(A+4,2)}')
    e(f'v_pk_add_f32 {vr(A,2)}, {vr(A,2)}, {vr(A+2,2)}')
    e(f'v_add_f32 v{a0}, v{a0}, v{a1}')
    reduce_sum(k,[a0])
    e(f'v_mul_f32 v{a0}, {fhex(1/1024)}, v{a0}')
    e(f'v_cvt_pk_bf16_f32 v{mb}, v{a0}, v{a0}')
    e(f'v_and_b32 v{mb}, 0xffff0000, v{mb}')
    e(f'v_sub_f32 v{dl}, v{a0}, v{mb}')
    e(f'v_readlane_b32 s{smb}, v{mb}, 63')
    Dd=T
    for i in range(0,16,2): e(f'v_pk_add_f32 {vr(Dd+i,2)}, {vr(H+i,2)}, {sr(smb,2)} op_sel_hi:[1,0] neg_lo:[0,1] neg_hi:[0,1]')
    for j,i in enumerate(range(0,16,2)):
        a=A+2*(j&1); b=A+4+2*(j&1)
        if j<2:
            e(f'v_pk_mul_f32 {vr(a,2)}, {vr(Dd+i,2)}, {vr(Dd+i,2)}'); e(f'v_pk_mul_f32 {vr(b,2)}, {vr(Dd+i,2)}, {vr(Wf+i,2)}')
        else:
            e(f'v_pk_fma_f32 {vr(a,2)}, {vr(Dd+i,2)}, {vr(Dd+i,2)}, {vr(a,2)}'); e(f'v_pk_fma_f32 {vr(b,2)}, {vr(Dd+i,2)}, {vr(Wf+i,2)}, {vr(b,2)}')
    e(f'v_pk_add_f32 {vr(A,2)}, {vr(A,2)}, {vr(A+2,2)}'); e(f'v_pk_add_f32 {vr(A+4,2)}, {vr(A+4,2)}, {vr(A+6,2)}')
    e(f'v_add_f32 v{a0}, v{a0}, v{a1}'); e(f'v_add_f32 v{a2}, v{a2}, v{a2+1}')
    reduce_sum(k,[a0,a2])
    ln_scalar(k,a0,dl)
    key=A+6
    e(f'''v_rcp_f32 v{a1}, v{a0}
    s_lshl_b32 s{st}, s{sw_}, 8
    s_add_u32 s{st}, s{st}, s{s0}
    s_sub_u32 s{st}, 0x87ff, s{st}
    v_mul_f32 v{a2}, v{a2}, v{a1}
    v_readlane_b32 s{srs}, v{a1}, 63
    v_cvt_pk_bf16_f32 v{a2}, v{a2}, v{a2}
    v_ashrrev_i32 v{a2+1}, 31, v{a2}
    v_or_b32 v{a2+1}, 0x80000000, v{a2+1}
    v_xor_b32 v{a2}, v{a2}, v{a2+1}
    v_and_b32 v{a2}, 0xffff0000, v{a2}
    v_or_b32 v{key}, s{st}, v{a2}
    v_lshlrev_b32 v{t0}, 2, v{w}
    s_mov_b32 exec_lo, 0
    s_mov_b32 exec_hi, 0x80000000
    ds_write_b32 v{t0}, v{key} offset:{L_KEY}
    s_mov_b64 exec, -1
    v_lshlrev_b32 v{t1}, 2, v{lo3}
    v_mov_b32 v{t0}, 0
    s_lshl_b32 s{st}, s2, {KSH}
    s_add_u32 s{st}, s{st}, {WS_KEYS}''')
    k.stamp(8)
    OK_=T+16
    e(f'''s_waitcnt lgkmcnt(0)
    s_barrier
    s_cmp_lg_u32 s{sw_}, 0
    s_cbranch_scc1 KP_NOKEY
    ds_read_b32 v{t2}, v{t1} offset:{L_KEY}
    s_mov_b64 exec, 0xff
    s_waitcnt lgkmcnt(0)
    buffer_store_dword v{t2}, v{t1}, {sr(sw,4)}, s{st} offen sc1
    s_mov_b64 exec, -1
    KP_NOKEY:
    ds_read_b128 {vr(OK_,4)}, v{t0} offset:{L_KEY}
    ds_read_b128 {vr(OK_+4,4)}, v{t0} offset:{L_KEY+16}''')
    PH=tmp; PL=Wf; PO=Wf+8
    for q in range(8): e(f'v_cvt_pk_bf16_f32 v{PH+q}, v{H+2*q}, v{H+2*q+1}')
    for i in range(0,16,2): e(f'v_pk_mul_f32 {vr(Dd+i,2)}, {vr(Dd+i,2)}, {sr(srs,2)} op_sel_hi:[1,0]')
    for q in range(8): e(f'v_cvt_pk_bf16_f32 v{PL+q}, v{Dd+2*q}, v{Dd+2*q+1}')
    for i in range(0,16,2): e(f'v_pk_add_f32 {vr(Dd+i,2)}, {vr(Dd+i,2)}, {vr(H+i,2)}')
    for q in range(8): e(f'v_cvt_pk_bf16_f32 v{PO+q}, v{Dd+2*q}, v{Dd+2*q+1}')
    OPG=C; OPD=C+32
    sp0=sA; sp1=sA+1
    e(f's_mov_b32 s{sp0}, 0x05040100'); e(f's_mov_b32 s{sp1}, 0x07060302')
    KK=T
    e(f'''v_lshrrev_b32 v{t0}, 1, v0
    v_lshlrev_b32 v{t0}, {KSH}, v{t0}
    v_and_b32 v{t2}, 1, v0
    v_lshl_or_b32 v{t0}, v{t2}, 4, v{t0}
    s_mov_b32 s{st}, {WS_KEYS}
    s_mov_b32 s{sit}, 0
    s_mov_b64 {sr(sm,2)}, -1
    KP_KLOOP:
    s_mov_b64 exec, {sr(sm,2)}
    buffer_load_dwordx4 {vr(KK,4)}, v{t0}, {sr(sw,4)}, s{st} offen sc1
    s_mov_b64 exec, -1
    s_add_u32 s{sit}, s{sit}, 1
    s_waitcnt vmcnt(0)
    v_max3_u32 v{t2}, v{KK}, v{KK+1}, v{KK+2}
    v_max_u32 v{t2}, v{t2}, v{KK+3}
    v_cmp_eq_u32 {sr(sm,2)}, -1, v{t2}
    s_cmp_gt_u32 s{sit}, {SPIN}
    s_cbranch_scc1 KP_KDONE
    s_cmp_lg_u64 {sr(sm,2)}, 0
    s_cbranch_scc1 KP_KLOOP
    KP_KDONE:
    s_waitcnt lgkmcnt(0)''')
    k.stamp(9)
    mp=k.s(8,2); cnt=t2
    for o in range(8):
        for i in range(4): e(f'v_cmp_gt_u32 {sr(mp+2*i,2)}, v{KK+i}, v{OK_+o}')
        for i in range(4): e(f's_bcnt1_i32_b64 s{mp+2*i}, {sr(mp+2*i,2)}')
        e(f's_add_u32 s{mp}, s{mp}, s{mp+2}'); e(f's_add_u32 s{mp+4}, s{mp+4}, s{mp+6}'); e(f's_add_u32 s{st}, s{mp}, s{mp+4}')
        e(f'v_writelane_b32 v{cnt}, s{st}, {o}')
    e(f'''s_mov_b64 exec, 0xff
    ds_add_u32 v{t1}, v{cnt} offset:{L_CNT}
    s_mov_b64 exec, -1
    v_lshlrev_b32 v{t0}, 2, v{w}
    s_waitcnt lgkmcnt(0)
    s_barrier
    ds_read_b32 v{t2}, v{t0} offset:{L_CNT}
    s_waitcnt lgkmcnt(0)
    v_readfirstlane_b32 s{st}, v{t2}
    s_cmp_ge_u32 s{st}, 8
    s_cbranch_scc1 KP_PUBDONE
    s_mov_b32 s{ssoff}, 0x40000000
    s_lshl_b32 s{st2}, s{st}, 12
    s_add_u32 s{st2}, s{st2}, {WS_XS}
    s_lshl_b32 s{st}, s{st}, 7
    s_add_u32 s{st}, s{st}, {WS_HDR}
    buffer_store_dwordx4 {vr(PL,4)}, v{boff}, {sr(sw,4)}, s{st2} offen sc1
    buffer_store_dwordx4 {vr(PL+4,4)}, v{boff}, {sr(sw,4)}, s{st2} offen offset:1024 sc1
    buffer_store_dwordx4 {vr(PH,4)}, v{boff}, {sr(sw,4)}, s{st2} offen offset:2048 sc1
    buffer_store_dwordx4 {vr(PH+4,4)}, v{boff}, {sr(sw,4)}, s{st2} offen offset:3072 sc1
    v_mov_b32 v{t0}, 0
    s_mov_b32 exec_lo, 0
    s_mov_b32 exec_hi, 0x80000000
    buffer_store_dword v{key}, v{t0}, {sr(sw,4)}, s{st} offen sc1
    s_mov_b64 exec, -1
    KP_PUBDONE:
    s_cmp_ge_u32 s{sy}, 28
    s_cbranch_scc1 KP_OUTST''')
    for q in range(4):
        for j in range(8):
            e(f'v_perm_b32 v{OPG+4*j+q}, v{GU+4*(2*q+1)+(j>>1)}, v{GU+4*(2*q)+(j>>1)}, s{sp1 if j&1 else sp0}')
    OPDi=lambda ee,j: OPD+(ee*4+j)*4
    e(f's_cmp_lt_u32 s{sw_}, 4'); e('s_cbranch_scc1 KP_NOPD')
    for ee in range(2):
        for qq in range(4):
            for j in range(4):
                e(f'v_perm_b32 v{OPDi(ee,j)+qq}, v{DW+16*ee+2*(2*qq+1)+(j>>1)}, v{DW+16*ee+2*(2*qq)+(j>>1)}, s{sp1 if j&1 else sp0}')
    e('KP_NOPD:')
    XB=opT
    e(f'''v_lshlrev_b32 v{t0}, 12, v{lo3}
    v_lshl_add_u32 v{t0}, v{krow}, 1, v{t0}
    s_lshl_b32 s{st}, s{sq}, 9
    s_add_u32 s{st}, s{st}, {WS_XS}
    v_bfe_u32 v{t1}, v0, 3, 1
    v_and_b32 v{wa}, 3, v{w}
    v_lshl_add_u32 v{wa}, v{wa}, 1, v{t1}
    v_lshlrev_b32 v{wa}, 1, v{wa}
    v_lshrrev_b32 v{ra}, 2, v{w}
    v_add_u32 v{wa}, v{wa}, v{ra}
    v_lshlrev_b32 v{wa}, 11, v{wa}
    v_lshl_add_u32 v{wa}, v{lo3}, 5, v{wa}
    v_and_b32 v{ra}, 1, v{g}
    v_lshl_add_u32 v{wa}, v{ra}, 4, v{wa}
    v_lshrrev_b32 v{ra}, 1, v{g}
    v_cmp_eq_u32 {sr(sB,2)}, v{ra}, v{t1}
    v_lshlrev_b32 v{ra}, 2, v0
    v_lshlrev_b32 v{nra}, 3, v0
    s_mov_b32 s{sit}, 0
    s_mov_b64 {sr(sm,2)}, -1
    s_sleep {opt("xsleep",4)}
    KP_XLOOP:
    s_mov_b64 exec, {sr(sm,2)}
    buffer_load_dwordx4 {vr(XB,4)}, v{t0}, {sr(sw,4)}, s{st} offen sc1
    s_mov_b64 exec, -1
    s_add_u32 s{sit}, s{sit}, 1
    s_waitcnt vmcnt(0)
    v_max3_u32 v{t2}, v{XB}, v{XB+1}, v{XB+2}
    v_max_u32 v{t2}, v{t2}, v{XB+3}
    v_cmp_eq_u32 {sr(sm,2)}, -1, v{t2}
    s_cmp_gt_u32 s{sit}, {SPIN}
    s_cbranch_scc1 KP_XDONE
    s_cmp_lg_u64 {sr(sm,2)}, 0
    s_cbranch_scc1 KP_XLOOP
    KP_XDONE:''')
    k.stamp(10)
    for j in range(8): e(f'v_mfma_f32_16x16x32_bf16 {vr(T+4*j,4)}, {vr(OPG+4*j,4)}, {vr(XB,4)}, 0')
    e(f'''s_lshl_b32 s{st2}, s{sfb}, 14
    s_add_u32 s{st2}, s{st2}, {WS_P1}
    s_lshl_b32 s{st}, s{sq}, 12
    s_add_u32 s{st}, s{st}, s{st2}
    s_add_u32 s{sgo+1}, s{st2}, 4096
    s_add_u32 s{sgo+2}, s{st2}, 8192
    s_add_u32 s{sgo+3}, s{st2}, 12288
    s_mov_b64 exec, {sr(sB,2)}''')
    for j in range(8): e(f'ds_write_b128 v{wa}, {vr(T+4*j,4)} offset:{L_GU+256*j}')
    e('s_mov_b64 exec, -1'); e('s_waitcnt lgkmcnt(0)'); e('s_barrier')
    R=GU
    for pi in range(8): e(f'ds_read2st64_b32 {vr(R+2*pi,2)}, v{ra} offset0:{pi*16} offset1:{pi*16+8}')
    for pi in range(0,8,2):
        e(f's_waitcnt lgkmcnt({6-pi})')
        e(f'v_pk_add_f32 {vr(R+2*pi,2)}, {vr(R+2*pi,2)}, {vr(R+2*pi+2,2)}')
    e(f'v_pk_add_f32 {vr(R,2)}, {vr(R,2)}, {vr(R+4,2)}'); e(f'v_pk_add_f32 {vr(R+8,2)}, {vr(R+8,2)}, {vr(R+12,2)}')
    e(f'v_pk_add_f32 {vr(R,2)}, {vr(R,2)}, {vr(R+8,2)}')
    e(f'v_and_b32 v{R}, -2, v{R}')
    e(f'buffer_store_dwordx2 {vr(R,2)}, v{nra}, {sr(sw,4)}, s{st} offen sc1')
    Q=R+16
    e(f'''v_lshrrev_b32 v{t0}, 3, v{l}
    v_mul_u32_u24 v{t0}, 144, v{t0}
    v_lshl_add_u32 v{t0}, v{lo3}, 4, v{t0}
    v_lshl_add_u32 v{t0}, v{w}, 1, v{t0}
    v_mul_u32_u24 v{t1}, 144, v{lo3}
    v_lshl_add_u32 v{t1}, v{g}, 4, v{t1}
    s_mov_b32 s{sit}, 0
    s_mov_b64 {sr(sm,2)}, -1
    s_sleep {opt("gsleep",8)}
    KP_GLOOP:
    s_mov_b64 exec, {sr(sm,2)}
    buffer_load_dwordx2 {vr(Q,2)}, v{nra}, {sr(sw,4)}, s{st2} offen sc1
    buffer_load_dwordx2 {vr(Q+2,2)}, v{nra}, {sr(sw,4)}, s{sgo+1} offen sc1
    buffer_load_dwordx2 {vr(Q+4,2)}, v{nra}, {sr(sw,4)}, s{sgo+2} offen sc1
    buffer_load_dwordx2 {vr(Q+6,2)}, v{nra}, {sr(sw,4)}, s{sgo+3} offen sc1
    s_mov_b64 exec, -1
    s_add_u32 s{sit}, s{sit}, 1
    s_waitcnt vmcnt(0)
    v_or3_b32 v{t2}, v{Q}, v{Q+2}, v{Q+4}
    v_or_b32 v{t2}, v{t2}, v{Q+6}
    v_and_b32 v{t2}, 1, v{t2}
    v_cmp_eq_u32 {sr(sm,2)}, 1, v{t2}
    s_cmp_gt_u32 s{sit}, {SPIN}
    s_cbranch_scc1 KP_GDONE
    s_cmp_lg_u64 {sr(sm,2)}, 0
    s_cbranch_scc1 KP_GLOOP
    KP_GDONE:''')
    k.stamp(11)
    gg=Q; uu=Q+1; tt=Q+2
    e(f'''v_pk_add_f32 {vr(Q,2)}, {vr(Q,2)}, {vr(Q+2,2)}
    v_pk_add_f32 {vr(Q+4,2)}, {vr(Q+4,2)}, {vr(Q+6,2)}
    v_pk_add_f32 {vr(Q,2)}, {vr(Q,2)}, {vr(Q+4,2)}
    v_cvt_pk_bf16_f32 v{tt}, v{gg}, v{uu}
    v_lshlrev_b32 v{gg}, 16, v{tt}
    v_and_b32 v{uu}, 0xffff0000, v{tt}
    v_mul_f32 v{tt}, {fhex(-1.4426950408889634)}, v{gg}
    v_exp_f32 v{tt}, v{tt}
    v_add_f32 v{tt}, 1.0, v{tt}
    v_rcp_f32 v{tt}, v{tt}
    v_mul_f32 v{gg}, v{gg}, v{tt}''')
    round_bf16(k,gg)
    e(f'''v_mul_f32 v{gg}, v{gg}, v{uu}
    v_cvt_pk_bf16_f32 v{gg}, v{gg}, v{gg}
    ds_write_b16 v{t0}, v{gg} offset:{L_ACT}
    s_waitcnt lgkmcnt(0)
    s_barrier
    s_cmp_lt_u32 s{sw_}, 4
    s_cbranch_scc1 KP_RED''')
    AC=opT
    e(f'ds_read_b128 {vr(AC,4)}, v{t1} offset:{L_ACT}')
    e(f'ds_read_b128 {vr(AC+4,4)}, v{t1} offset:{L_ACT+64}')
    e(f'''v_lshlrev_b32 v{t0}, 7, v{g}
    v_lshrrev_b32 v{t2}, 3, v{n}
    v_add_u32 v{t0}, v{t0}, v{t2}
    v_mul_u32_u24 v{t0}, 7168, v{t0}
    v_lshl_add_u32 v{t0}, v{lo3}, 4, v{t0}
    s_lshl_b32 s{st}, s{sq}, 2
    s_add_u32 s{st}, s{st}, s{sw_}
    s_sub_u32 s{st}, s{st}, 4
    s_mul_i32 s{st}, s{st}, {2*7168}
    s_lshl_b32 s{st2}, s{sfb}, 7
    s_add_u32 s{st}, s{st}, s{st2}
    s_add_u32 s{sgo}, s{st}, {WS_P2}''')
    for r in range(1,4): e(f's_add_u32 s{sgo+r}, s{sgo}, {r*32*7168}')
    for ee in range(2):
        e(f's_waitcnt lgkmcnt({1-ee})')
        for j in range(4):
            e(f'v_mfma_f32_16x16x32_bf16 {vr(T+4*j,4)}, {vr(AC+4*ee,4)}, {vr(OPDi(ee,j),4)}, {"0" if ee==0 else vr(T+4*j,4)}')
    S=T+16
    e('s_mov_b32 exec_hi, 0')
    for r in range(4):
        for j in range(4): e(f'v_mov_b32 v{S+4*r+j}, v{T+4*j+r}' if j&1 else f'v_and_b32 v{S+4*r+j}, -2, v{T+4*j+r}')
        e(f'buffer_store_dwordx4 {vr(S+4*r,4)}, v{t0}, {sr(sw,4)}, s{sgo+r} offen sc1')
    e('s_mov_b64 exec, -1')
    k.stamp(12)
    e('KP_OUTST:')
    e(f'''buffer_store_dwordx4 {vr(PO,4)}, v{xoff}, {sr(so_,4)}, s{ssoff} offen {OUTF}
    buffer_store_dwordx4 {vr(PO+4,4)}, v{xoff}, {sr(so_,4)}, s{ssoff} offen offset:1024 {OUTF}''')
    e('s_branch KP_END')
    e('KP_RED:')
    e(f'''buffer_store_dwordx4 {vr(PO,4)}, v{xoff}, {sr(so_,4)}, s{ssoff} offen {OUTF}
    buffer_store_dwordx4 {vr(PO+4,4)}, v{xoff}, {sr(so_,4)}, s{ssoff} offen offset:1024 {OUTF}
    s_cmp_ge_u32 s{sw_}, 2
    s_cbranch_scc1 KP_END
    s_cmp_ge_u32 s{sy}, 16
    s_cbranch_scc1 KP_END''')
    PR=T; hk=A; el=A+1; eh=A+2; col=A+3; sg=A+4
    scb=sgo+4
    e(f'''s_lshl_b32 s{scb}, s{sy}, 1
    s_add_u32 s{scb}, s{scb}, s{sw_}
    s_lshl_b32 s{st}, s{sxc}, 5
    s_add_u32 s{st}, s{st}, s{scb}
    s_mul_i32 s{sgo}, s{st}, 7168
    s_add_u32 s{sgo}, s{sgo}, {WS_P2}
    s_add_u32 s{sgo+1}, s{sgo}, 4096
    s_lshl_b32 s{scb}, s{scb}, 6
    s_lshl_b32 s{sgo+2}, s{sxc}, 12
    s_add_u32 s{sgo+2}, s{sgo+2}, s{scb}
    s_add_u32 s{sgo+2}, s{sgo+2}, {WS_XS}
    s_lshl_b32 s{sgo+3}, s{sxc}, 7
    s_add_u32 s{sgo+3}, s{sgo+3}, {WS_HDR}
    v_lshlrev_b32 v{t0}, 4, v{l}
    v_and_b32 v{col}, 1, v{g}
    v_lshlrev_b32 v{col}, 1, v{col}
    v_lshrrev_b32 v{t1}, 1, v{g}
    v_or_b32 v{col}, v{col}, v{t1}
    v_lshl_add_u32 v{col}, v{lo3}, 2, v{col}
    v_lshlrev_b32 v{col}, 1, v{col}
    v_mov_b32 v{t1}, 0
    s_mov_b32 s{sit}, 0
    s_mov_b64 {sr(sm,2)}, -1
    s_sleep {opt("rsleep",12)}
    KP_RLOOP:
    s_mov_b64 exec, {sr(sm,2)}''')
    for i in range(7): e(f'buffer_load_dwordx4 {vr(PR+4*i,4)}, v{t0}, {sr(sw,4)}, s{sgo+(i>>2)} offen offset:{1024*(i&3)} sc1')
    e(f'''buffer_load_dword v{hk}, v{t1}, {sr(sw,4)}, s{sgo+3} offen sc1
    buffer_load_sshort v{el}, v{col}, {sr(sw,4)}, s{sgo+2} offen sc1
    buffer_load_sshort v{eh}, v{col}, {sr(sw,4)}, s{sgo+2} offen offset:2048 sc1
    s_mov_b64 exec, -1
    s_add_u32 s{sit}, s{sit}, 1
    s_waitcnt vmcnt(0)
    v_max3_u32 v{t2}, v{hk}, v{el}, v{eh}
    v_or_b32 v{wa}, v{PR}, v{PR+2}''')
    for i in range(4,28,4): e(f'v_or3_b32 v{wa}, v{wa}, v{PR+i}, v{PR+i+2}')
    e(f'''v_cmp_eq_u32 vcc, -1, v{t2}
    v_and_b32 v{wa}, 1, v{wa}
    v_cmp_eq_u32 {sr(sm,2)}, 1, v{wa}
    s_cmp_gt_u32 s{sit}, {SPIN}
    s_cbranch_scc1 KP_RDONE
    s_or_b64 {sr(sm,2)}, {sr(sm,2)}, vcc
    s_cbranch_scc1 KP_RLOOP
    KP_RDONE:''')
    k.stamp(12)
    for (a,b) in ((0,4),(1,5),(2,6),(0,2),(1,3),(0,1)):
        for h in (0,2): e(f'v_pk_add_f32 {vr(PR+4*a+h,2)}, {vr(PR+4*a+h,2)}, {vr(PR+4*b+h,2)}')
    e(f'''v_ashrrev_i32 v{sg}, 31, v{hk}
    v_not_b32 v{sg}, v{sg}
    v_permlane32_swap_b32 v{PR}, v{PR+1}
    v_permlane32_swap_b32 v{PR+2}, v{PR+3}
    v_or_b32 v{sg}, 0x80000000, v{sg}
    v_xor_b32 v{sg}, v{sg}, v{hk}
    v_add_f32 v{PR}, v{PR}, v{PR+1}
    v_add_f32 v{PR+2}, v{PR+2}, v{PR+3}
    v_and_b32 v{sg}, 0xffff0000, v{sg}
    v_mul_f32 v{sg}, {fhex(-1.4426950408889634)}, v{sg}
    v_permlane16_swap_b32 v{PR}, v{PR+2}
    v_exp_f32 v{sg}, v{sg}
    v_add_f32 v{PR}, v{PR}, v{PR+2}
    v_add_f32 v{sg}, 1.0, v{sg}
    v_rcp_f32 v{sg}, v{sg}
    v_add_f32_dpp v{PR}, v{PR}, v{PR} row_ror:8 row_mask:0xf bank_mask:0xf
    v_and_b32 v{t0}, 0x7ff, v{hk}
    v_sub_u32 v{t0}, 0x7ff, v{t0}
    v_lshl_add_u32 v{t0}, v{t0}, 11, v{col}''')
    round_bf16(k,sg); round_bf16(k,PR)
    e(f'v_lshlrev_b32 v{el}, 16, v{el}'); e(f'v_lshlrev_b32 v{eh}, 16, v{eh}')
    e(f'v_mul_f32 v{PR}, v{PR}, v{sg}'); round_bf16(k,PR)
    e(f'v_add_f32 v{PR}, v{PR}, v{el}'); round_bf16(k,PR)
    e(f'''v_add_f32 v{PR}, v{PR}, v{eh}
    v_cvt_pk_bf16_f32 v{PR}, v{PR}, v{PR}
    s_mov_b32 exec_lo, 0x00ff00ff
    s_mov_b32 exec_hi, 0x00ff00ff
    buffer_store_short v{PR}, v{t0}, {sr(so_,4)}, s{scb} offen''')
    k.finish('KP',sw)
    return k

if __name__=='__main__':
    ks=[k1(),kp()]
    txt=build(ks)
    open(sys.argv[1],'w').write(txt)
    for k in ks: print(k.name,'vgpr',k.maxv,'sgpr',k.ns,'instr',len(k.L),'nops',k.nnops)
```

```python
import sys, importlib, re
mod=sys.argv[1]
G=importlib.import_module(mod)
from asmlib import *
NAME='sequential_preLN__spectral_gfnet__moe_arch_mod__prompt_kernel'
a=G.k1(); b=G.kp()
k=K(NAME,256,512,max(a.lds,b.lds))
LA=list(a.L); LB=list(b.L)
i=LA.index('K1_END:')
LA=LA[:i+1]
LA=[x.replace('K1_EXIT','KP_EXIT').replace('fused_rest_kernel','KP_START') for x in LA]
bar=f'''s_mov_b64 exec, -1
s_load_dwordx2 s[4:5], s[0:1], 72
s_mov_b32 s6, 256
s_mov_b32 s7, 0x00020000
s_waitcnt vmcnt(0)
s_barrier
v_lshrrev_b32 v1, 6, v0
s_nop 0
v_readfirstlane_b32 s8, v1
s_nop 1
s_cmp_lg_u32 s8, 0
s_cbranch_scc1 GB_DONE
s_and_b32 s9, s2, 15
s_lshl_b32 s9, s9, 4
v_mov_b32 v1, 0
v_mov_b32 v2, 1
v_lshlrev_b32 v3, 4, v0
s_waitcnt lgkmcnt(0)
s_mov_b64 exec, 1
buffer_atomic_add v2, v1, s[4:7], s9 offen sc1
s_mov_b64 exec, 0xffff
s_mov_b32 s10, 0
GB_LOOP:
s_sleep 4
buffer_load_dword v4, v3, s[4:7], 0 offen sc1
s_add_u32 s10, s10, 1
s_waitcnt vmcnt(0)
v_cmp_ne_u32 vcc, 16, v4
s_cmp_gt_u32 s10, 20000
s_cbranch_scc1 GB_OUT
s_cbranch_vccnz GB_LOOP
GB_OUT:
s_mov_b64 exec, -1
GB_DONE:
s_waitcnt lgkmcnt(0)
s_barrier
KP_START:'''.split('\n')
LB=LB[2:]
out=[]
for x in LB:
    if re.match(r'buffer_load_dword(x4)? .*, s\[\d+:\d+\], s\d+ offen offset:(0|1024|2048|3072)$',x) and not out.count('KP_K2C:'):
        x+=' sc1'
    out.append(x)
k.L=LA+bar+out
k.maxv=max(a.maxv,b.maxv); k.ns=max(a.ns,b.ns)
t=build([k])
open(sys.argv[2]+'_list.s','w').write(t)
t2=t.replace(f'; @launch kernel={NAME} grid','; @launch grid')
open(sys.argv[2]+'.s','w').write(t2)
```

```python
from asmlib import *
def kdiag(A, B, mult=8, ws_bytes=0x1400000):
    (ka,ia,opa),(kb,ib,opb)=A,B
    k=K('diag_kernel',1,64,0); e=k.e
    e('s_cmp_ge_u32 s2, 1'); e('s_cbranch_scc1 KD_EXIT')
    sw=k.s(4)
    e(f's_load_dwordx2 s[{sw}:{sw+1}], s[0:1], 80'); e(f's_mov_b32 s{sw+2}, {ws_bytes}'); e(f's_mov_b32 s{sw+3}, 0x00020000')
    a=k.v(); R=k.v(32); acc=k.v(2); t=k.v(); so=k.s(); res=k.s(2); tm=k.s(2); tgt=k.s()
    e(f'v_lshlrev_b32 v{a}, 7, v0'); e('s_waitcnt lgkmcnt(0)')
    for j,(kk,ii,op) in enumerate((A,B)):
        for i in range(32):
            e(f's_mov_b32 s{so}, {0x1000000+kk*0x80000+i*8192+ii*8}')
            e(f'buffer_load_dword v{R+i}, v{a}, s[{sw}:{sw+3}], s{so} offen')
        e('s_waitcnt vmcnt(0)')
        if op=='min':
            for i in range(32): e(f'v_subrev_u32 v{R+i}, 1, v{R+i}')
        e(f'v_mov_b32 v{acc+j}, v{R}')
        for i in range(1,32): e(f'v_{op}_u32 v{acc+j}, v{acc+j}, v{R+i}')
        for ctl in ('quad_perm:[1,0,3,2] row_mask:0xf bank_mask:0xf','quad_perm:[2,3,0,1] row_mask:0xf bank_mask:0xf',
              'row_half_mirror row_mask:0xf bank_mask:0xf','row_mirror row_mask:0xf bank_mask:0xf',
              'row_bcast:15 row_mask:0xa bank_mask:0xf','row_bcast:31 row_mask:0xc bank_mask:0xf'):
            e(f'v_{op}_u32_dpp v{acc+j}, v{acc+j}, v{acc+j} {ctl}')
        e(f'v_readlane_b32 s{res+j}, v{acc+j}, 63')
    e(f'''s_nop 4
    s_sub_u32 s{tgt}, s{res+1}, s{res}
    s_min_u32 s{tgt}, s{tgt}, 10000
    s_mul_i32 s{tgt}, s{tgt}, {mult}
    s_memrealtime s[{res}:{res+1}]
    s_waitcnt lgkmcnt(0)
    KD_LOOP:
    s_memrealtime s[{tm}:{tm+1}]
    s_waitcnt lgkmcnt(0)
    s_sub_u32 s{tm}, s{tm}, s{res}
    s_cmp_lt_u32 s{tm}, s{tgt}
    s_cbranch_scc1 KD_LOOP
    KD_EXIT:
    s_endpgm''')
    return k
```

```python
import sys, struct
from asmlib import *

def fhex(x): return '0x%08x' % struct.unpack('<I', struct.pack('<f', x))[0]

STAMP='--stamps' in sys.argv
WS_X1=0
WS_Z=0x500000
ZP=8*528*4
WS_KEYS=0xA00000
WS_STATS=0xA02000
WS_SEL=0xA06000
WS_ACT=0xA08000
WS_PART=0xA20000
WS_BYTES=0x1000000
A_X,A_WR,A_WI,A_BX,A_BWR,A_WG,A_WU,A_WD,A_OUT,A_DBG,A_WS=[8*i for i in range(11)]

def srd(k, argoff, nbytes):
    s=k.s(4)
    k.e(f's_load_dwordx2 {sr(s,2)}, s[0:1], {argoff}')
    k.e(f's_mov_b32 s{s+2}, {nbytes}')
    k.e(f's_mov_b32 s{s+3}, 0x00020000')
    return s

def reduce_sum(k, regs):
    for ctl in ('quad_perm:[1,0,3,2] row_mask:0xf bank_mask:0xf','quad_perm:[2,3,0,1] row_mask:0xf bank_mask:0xf',
                'row_half_mirror row_mask:0xf bank_mask:0xf','row_mirror row_mask:0xf bank_mask:0xf',
                'row_bcast:15 row_mask:0xa bank_mask:0xf','row_bcast:31 row_mask:0xc bank_mask:0xf'):
        for r in regs:
            k.e(f'v_add_f32_dpp v{r}, v{r}, v{r} {ctl}')

def round_bf16(k, r):
    k.e(f'v_cvt_pk_bf16_f32 v{r}, v{r}, v{r}')
    k.e(f'v_and_b32 v{r}, 0xffff0000, v{r}')

def s0_from_wg(k):
    s0=k.s(); t=k.s()
    k.e(f'''s_and_b32 s{s0}, s2, 0xfffffff0
    s_and_b32 s{t}, s2, 7
    s_lshl_b32 s{t}, s{t}, 1
    s_or_b32 s{s0}, s{s0}, s{t}
    s_bfe_u32 s{t}, s2, 0x10003
    s_or_b32 s{s0}, s{s0}, s{t}''')
    return s0

def k1():
    RP=528
    k=K('fft_rows_fwd_kernel',256,512,8*RP*4)
    e=k.e
    e('s_cmp_ge_u32 s2, 256'); e('s_cbranch_scc1 K1_EXIT'); k.stamp_init(0,STAMP)
    sx=srd(k,A_X,4194304); sw=srd(k,A_WS,WS_BYTES)
    s0=s0_from_wg(k)
    n=k.v(); g=k.v(); w=k.v(); voff=k.v(); t0=k.v(); t1=k.v()
    ssoff=k.s()
    e(f'''v_and_b32 v{n}, 15, v0
    v_bfe_u32 v{g}, v0, 4, 2
    v_lshrrev_b32 v{w}, 6, v0
    v_lshlrev_b32 v{voff}, 19, v{w}
    v_lshl_or_b32 v{voff}, v{n}, 6, v{voff}
    v_lshl_or_b32 v{voff}, v{g}, 4, v{voff}
    s_lshl_b32 s{ssoff}, s{s0}, 11
    s_waitcnt lgkmcnt(0)''')
    X=k.v(8)
    e(f'buffer_load_dwordx4 {vr(X,4)}, v{voff}, {sr(sx,4)}, s{ssoff} offen')
    e(f'buffer_load_dwordx4 {vr(X+4,4)}, v{voff}, {sr(sx,4)}, s{ssoff} offen offset:1024')
    k.stamp()
    sw_=k.s()
    e(f'v_readfirstlane_b32 s{sw_}, v{w}')
    Iu=k.v(8); ee=k.v(); val=k.v()
    e(f'''v_lshrrev_b32 v{ee}, 1, v{n}
    v_lshlrev_b32 v{t0}, 2, v{g}
    v_sub_u32 v{ee}, v{ee}, v{t0}
    v_and_b32 v{t1}, 1, v{n}
    v_lshlrev_b32 v{val}, 4, v{t1}
    v_mov_b32 v{Iu}, 0x3f80
    v_lshlrev_b32 v{val}, v{val}, v{Iu}''')
    sm=[k.s(2) for _ in range(4)]
    for u in range(2):
        for q in range(4): e(f'v_cmp_eq_u32 {sr(sm[q],2)}, {q-8*u}, v{ee}')
        for q in range(4): e(f'v_cndmask_b32 v{Iu+4*u+q}, 0, v{val}, {sr(sm[q],2)}')
    fn=k.v(); fg=k.v(); sgn=k.v()
    e(f'''v_cvt_f32_u32 v{fn}, v{n}
    v_cvt_f32_u32 v{fg}, v{t0}
    v_mul_f32 v{fn}, {fhex(1/32)}, v{fn}
    v_mul_u32_u24 v{sgn}, 0x8000, v{t1}
    v_lshl_or_b32 v{sgn}, v{sgn}, 16, v{sgn}''')
    fb=k.v(8)
    for u in range(2):
        for r in range(4): e(f'v_add_f32 v{fb+4*u+r}, {fhex(16*u+r)}, v{fg}')
    FC0=k.v(4);FSn0=k.v(4);FSp0=k.v(4);FC1=k.v(4);FSn1=k.v(4)
    T=k.v(32)
    for r in range(4): e(f'v_mul_f32 v{T+r}, v{fn}, v{fb+r}')
    for r in range(4):
        e(f'v_cos_f32 v{T+4+r}, v{T+r}'); e(f'v_sin_f32 v{T+8+r}, v{T+r}')
    for q in range(2):
        e(f'v_cvt_pk_f16_f32 v{FC0+q}, v{T+4+2*q}, v{T+5+2*q}')
        e(f'v_cvt_pk_f16_f32 v{FSp0+q}, v{T+8+2*q}, v{T+9+2*q}')
    for q in range(2):
        e(f'v_xor_b32 v{FC0+2+q}, v{FC0+q}, v{sgn}')
        e(f'v_xor_b32 v{FSp0+2+q}, v{FSp0+q}, v{sgn}')
    for q in range(4):
        e(f'v_xor_b32 v{FSn0+q}, 0x80008000, v{FSp0+q}')
        e(f'v_xor_b32 v{FC1+q}, 0x80000000, v{FC0+q}')
        e(f'v_xor_b32 v{FSn1+q}, 0x00008000, v{FSp0+q}')
    TC=k.v(16); TS=k.v(16); fa=k.v(2)
    e(f'v_mul_f32 v{fa}, {fhex(1/32)}, v{fn}')
    e(f'v_add_f32 v{fa+1}, {fhex(16/1024)}, v{fa}')
    ti=lambda u,v,r: (u*2+v)*4+r
    for u in range(2):
        for v in range(2):
            for r in range(4): e(f'v_mul_f32 v{T+ti(u,v,r)}, v{fa+v}, v{fb+4*u+r}')
    for i in range(16):
        e(f'v_cos_f32 v{TC+i}, v{T+i}'); e(f'v_sin_f32 v{TS+i}, v{T+i}')
    R8=k.v(2)
    e(f'''v_lshrrev_b32 v{T}, 1, v{n}
    v_mul_u32_u24 v{T+1}, v{T}, v{g}
    v_lshl_add_u32 v{T+1}, v{t1}, 1, v{T+1}
    v_lshl_add_u32 v{T+2}, v{T}, 2, v{T+1}
    v_cvt_f32_u32 v{T+1}, v{T+1}
    v_cvt_f32_u32 v{T+2}, v{T+2}
    v_mul_f32 v{T+1}, {fhex(1/8)}, v{T+1}
    v_mul_f32 v{T+2}, {fhex(1/8)}, v{T+2}
    v_cos_f32 v{T+3}, v{T+1}
    v_sin_f32 v{T+4}, v{T+1}
    v_cos_f32 v{T+5}, v{T+2}
    v_sin_f32 v{T+6}, v{T+2}
    v_cvt_pk_f16_f32 v{R8}, v{T+3}, v{T+4}
    v_cvt_pk_f16_f32 v{R8+1}, v{T+5}, v{T+6}''')
    half0=k.v()
    e(f'''v_and_b32 v{T}, 63, v0
    v_cmp_eq_u32 vcc, 0, v{T}
    v_mov_b32 v{half0}, 1.0
    v_mov_b32 v{T+1}, 0.5
    v_cndmask_b32 v{half0}, v{half0}, v{T+1}, vcc''')
    wa=k.v(); ra=k.v(4); so=k.v()
    e(f'''v_lshrrev_b32 v{T}, 2, v{n}
    v_and_b32 v{T+1}, 2, v{n}
    v_xor_b32 v{T}, v{T}, v{T+1}
    v_lshlrev_b32 v{T}, 4, v{T}
    v_and_b32 v{T+1}, 3, v{n}
    v_lshl_or_b32 v{T}, v{T+1}, 6, v{T}
    v_lshl_or_b32 v{T}, v{g}, 9, v{T}
    v_mul_u32_u24 v{wa}, {RP*4}, v{w}
    v_add_u32 v{wa}, v{wa}, v{T}''')
    e(f'''v_lshrrev_b32 v{T}, 2, v{n}
    v_lshlrev_b32 v{T}, 2, v{T}
    v_lshl_or_b32 v{T}, v{T+1}, 4, v{T}
    v_lshl_or_b32 v{T}, v{w}, 8, v{T}
    v_mul_u32_u24 v{T+2}, {RP*4}, v{g}
    v_add_u32 v{ra}, v{T}, v{T+2}
    v_add_u32 v{ra+1}, 64, v{ra}
    v_xor_b32 v{T}, 32, v{T}
    v_add_u32 v{T}, v{T}, v{T+2}
    v_add_u32 v{ra+2}, 128, v{T}
    v_add_u32 v{ra+3}, 192, v{T}''')
    nyra=k.v()
    e(f'v_add_u32 v{nyra}, 2048, v{T+2}')
    e(f'''v_and_b32 v{T}, 1, v{w}
    v_lshrrev_b32 v{T+3}, 1, v{w}
    v_lshl_add_u32 v{T}, v{T+3}, 3, v{T}
    v_lshrrev_b32 v{T+3}, 2, v{n}
    v_lshl_add_u32 v{T}, v{T+3}, 1, v{T}
    v_mul_u32_u24 v{T+3}, 66, v{g}
    v_add_u32 v{T}, v{T}, v{T+3}
    v_lshlrev_b32 v{so}, 14, v{T}
    v_lshl_or_b32 v{so}, v{T+1}, 4, v{so}''')
    nyso=k.v()
    e(f'''v_add_u32 v{T+3}, 32, v{T+3}
    v_lshlrev_b32 v{nyso}, 14, v{T+3}''')
    sst=k.s(2)
    e(f'''s_lshl_b32 s{sst}, s{s0}, 6
    s_add_u32 s{sst}, s{sst}, {WS_X1}
    s_add_u32 s{sst+1}, s{sst}, {33*16384}''')
    sones=k.s()
    e(f's_mov_b32 s{sones}, 0x3f803f80')
    Dx=k.v(16)
    a0=k.v(); a1=k.v(); dl=k.v()
    k.stamp()
    e('s_waitcnt vmcnt(1)')
    k.stamp()
    for u in range(2): e(f'v_mfma_f32_16x16x32_bf16 {vr(Dx+4*u,4)}, {vr(X,4)}, {vr(Iu+4*u,4)}, 0')
    e(f'v_dot2_f32_bf16 v{a0}, v{X}, s{sones}, 0')
    for q in range(1,4): e(f'v_dot2_f32_bf16 v{a0}, v{X+q}, s{sones}, v{a0}')
    e('s_waitcnt vmcnt(0)')
    for u in range(2): e(f'v_mfma_f32_16x16x32_bf16 {vr(Dx+8+4*u,4)}, {vr(X+4,4)}, {vr(Iu+4*u,4)}, 0')
    for q in range(4,8): e(f'v_dot2_f32_bf16 v{a0}, v{X+q}, s{sones}, v{a0}')
    reduce_sum(k,[a0])
    smb=k.s(); srs=k.s()
    e(f'v_mul_f32 v{a0}, {fhex(1/1024)}, v{a0}')
    e(f'v_cvt_pk_bf16_f32 v{a1}, v{a0}, v{a0}')
    e(f'v_and_b32 v{a1}, 0xffff0000, v{a1}')
    e(f'v_sub_f32 v{dl}, v{a0}, v{a1}')
    e(f'v_readlane_b32 s{smb}, v{a1}, 63')
    for i in range(16): e(f'v_subrev_f32 v{Dx+i}, s{smb}, v{Dx+i}')
    e(f'v_mul_f32 v{a0}, v{Dx}, v{Dx}'); e(f'v_mul_f32 v{a1}, v{Dx+1}, v{Dx+1}')
    for i in range(2,16): e(f'v_fmac_f32 v{a0 if i%2==0 else a1}, v{Dx+i}, v{Dx+i}')
    e(f'v_add_f32 v{a0}, v{a0}, v{a1}')
    reduce_sum(k,[a0])
    e(f'v_mul_f32 v{a0}, {fhex(1/1024)}, v{a0}')
    e(f'v_fma_f32 v{a0}, -v{dl}, v{dl}, v{a0}')
    round_bf16(k,a0)
    e(f'v_add_f32 v{a0}, {fhex(1e-5)}, v{a0}')
    round_bf16(k,a0)
    e(f'v_sqrt_f32 v{a0}, v{a0}')
    round_bf16(k,a0)
    e(f'v_rcp_f32 v{a0}, v{a0}')
    e(f'v_readlane_b32 s{srs}, v{a0}, 63')
    opX=X
    for hi in range(2):
        for u in range(2):
            for t in range(2):
                for q in range(2):
                    e(f'v_fma_mix{"hi" if hi else "lo"}_f16 v{opX+4*u+2*t+q}, v{Dx+8*t+4*u+2*q+hi}, s{srs}, 0')
    Ti=lambda u,v,c: T+((u*2+v)*2+c)*4
    F=[[FC0,FSn0],[FC1,FSn1]]
    for v in range(2):
        for u in range(2):
            for c in range(2):
                e(f'v_mfma_f32_16x16x32_f16 {vr(Ti(u,v,c),4)}, {vr(opX+4*u,4)}, {vr(F[v][c],4)}, 0')
    opT=lambda v,c: Dx+(v*2+c)*4
    tmp=k.v(8)
    Vv=k.v(16); VN=k.v(4)
    Vi=lambda v,c: Vv+(v*2+c)*4
    for v in range(2):
        for u in range(2):
            for r in range(4):
                e(f'v_mul_f32 v{tmp+r}, v{Ti(u,v,0)+r}, v{TC+ti(u,v,r)}')
                e(f'v_mul_f32 v{tmp+4+r}, v{Ti(u,v,1)+r}, v{TC+ti(u,v,r)}')
            for r in (0,2,1,3):
                hl='hi' if r&1 else 'lo'
                e(f'v_fma_mix{hl}_f16 v{opT(v,0)+2*u+(r>>1)}, v{Ti(u,v,1)+r}, v{TS+ti(u,v,r)}, v{tmp+r}')
                e(f'v_fma_mix{hl}_f16 v{opT(v,1)+2*u+(r>>1)}, -v{Ti(u,v,0)+r}, v{TS+ti(u,v,r)}, v{tmp+4+r}')
        e(f'v_mfma_f32_16x16x32_f16 {vr(Vi(v,0),4)}, {vr(FC0,4)}, {vr(opT(v,0),4)}, 0')
        e(f'v_mfma_f32_16x16x32_f16 {vr(Vi(v,1),4)}, {vr(FC0,4)}, {vr(opT(v,1),4)}, 0')
        e(f'v_mfma_f32_16x16x32_f16 {vr(Vi(v,0),4)}, {vr(FSp0,4)}, {vr(opT(v,1),4)}, {vr(Vi(v,0),4)}')
        e(f'v_mfma_f32_16x16x32_f16 {vr(Vi(v,1),4)}, {vr(FSn0,4)}, {vr(opT(v,0),4)}, {vr(Vi(v,1),4)}')
        if v==0: e(f'v_mfma_f32_16x16x32_f16 {vr(VN,4)}, {vr(FC1,4)}, {vr(opT(0,0),4)}, 0')
    P=T
    e(f'v_mul_f32 v{Vi(0,0)}, v{Vi(0,0)}, v{half0}')
    e(f'v_mul_f32 v{VN}, 0.5, v{VN}')
    for r in range(4): e(f'v_cvt_pk_f16_f32 v{P+r}, v{Vi(0,0)+r}, v{Vi(0,1)+r}')
    e(f'v_cvt_pk_f16_f32 v{VN}, v{VN}, 0')
    e(f'ds_write_b128 v{wa}, {vr(P,4)}')
    e('s_mov_b64 exec, 1')
    e(f'ds_write_b32 v{wa}, v{VN} offset:2048')
    e('s_mov_b64 exec, -1')
    for r in range(4): e(f'v_cvt_pk_f16_f32 v{P+4+r}, v{Vi(1,0)+r}, v{Vi(1,1)+r}')
    e(f'ds_write_b128 v{wa}, {vr(P+4,4)} offset:256')
    k.stamp()
    e('s_waitcnt lgkmcnt(0)'); e('s_barrier')
    k.stamp()
    B=T+8; Dr=T+16; O=Dx
    for i in range(4): e(f'ds_read2st64_b32 {vr(B+2*i,2)}, v{ra+i} offset0:0 offset1:33')
    for i in range(4):
        e(f's_waitcnt lgkmcnt({3-i})')
        e(f'v_mfma_f32_16x16x16_f16 {vr(Dr+4*i,4)}, {vr(R8,2)}, {vr(B+2*i,2)}, 0')
    for u in range(2):
        for i in range(4): e(f'v_cvt_pk_f16_f32 v{O+4*u+i}, v{Dr+4*i+2*u}, v{Dr+4*i+2*u+1}')
        e(f'buffer_store_dwordx4 {vr(O+4*u,4)}, v{so}, {sr(sw,4)}, s{sst+u} offen')
    k.stamp()
    e(f's_cmp_lg_u32 s{sw_}, 0'); e('s_cbranch_scc1 K1_END')
    e(f'ds_read2st64_b32 {vr(B,2)}, v{nyra} offset0:0 offset1:33')
    for i in range(8): e(f'v_mov_b32 v{Vv+i}, 0')
    e('s_waitcnt lgkmcnt(0)')
    e(f'v_mfma_f32_16x16x16_f16 {vr(Dr,4)}, {vr(R8,2)}, {vr(B,2)}, 0')
    e('s_mov_b32 exec_lo, 0x00010001'); e('s_mov_b32 exec_hi, 0x00010001')
    for u in range(2):
        e(f'v_cvt_pk_f16_f32 v{Vv+4*u+3}, v{Dr+2*u}, v{Dr+2*u+1}')
        e(f'buffer_store_dwordx4 {vr(Vv+4*u,4)}, v{nyso}, {sr(sw,4)}, s{sst+u} offen')
    k.finish('K1',sw)
    return k

def k2():
    k=K('fft_cols_kernel',264,256,0)
    e=k.e
    e('s_cmp_ge_u32 s2, 264'); e('s_cbranch_scc1 K2_EXIT'); k.stamp_init(1,STAMP)
    sw=srd(k,A_WS,WS_BYTES); swr=srd(k,A_WR,2048*513*2); swi=srd(k,A_WI,2048*513*2)
    n=k.v(); g=k.v(); w=k.v(); voff=k.v(); woff=k.v(); t0=k.v(); t1=k.v()
    sj=k.s(); skb=k.s(); sw_=k.s(); sblk=k.s(); sk0=k.s(); swo=k.s(4,1); st=k.s()
    e(f'''v_lshrrev_b32 v{w}, 6, v0
    v_and_b32 v{n}, 15, v0
    v_readfirstlane_b32 s{sw_}, v{w}
    v_bfe_u32 v{g}, v0, 4, 2
    s_and_b32 s{sj}, s2, 7
    s_lshr_b32 s{skb}, s2, 3
    s_lshl_b32 s{sk0}, s{skb}, 4
    s_lshl_b32 s{st}, s{sw_}, 2
    s_add_u32 s{sk0}, s{sk0}, s{st}
    s_cmp_gt_u32 s{sk0}, 512
    s_cbranch_scc1 K2_END
    s_mul_i32 s{sblk}, s{sj}, 33
    s_add_u32 s{sblk}, s{sblk}, s{skb}
    s_lshl_b32 s{sblk}, s{sblk}, 14
    s_lshl_b32 s{st}, s{sw_}, 4
    s_add_u32 s{sblk}, s{sblk}, s{st}
    v_lshlrev_b32 v{voff}, 6, v{n}
    v_lshl_or_b32 v{voff}, v{g}, 12, v{voff}
    s_waitcnt lgkmcnt(0)''')
    L=k.v(16)
    for i in range(4): e(f'buffer_load_dwordx4 {vr(L+4*i,4)}, v{voff}, {sr(sw,4)}, s{sblk} offen offset:{1024*i}')
    e(f'''v_lshlrev_b32 v{t0}, 3, v{n}
    v_lshl_or_b32 v{t1}, v{g}, 9, v{t0}
    v_mul_u32_u24 v{woff}, 1026, v{t1}
    s_min_u32 s{st}, s{sk0}, 509
    s_mul_i32 s{swo}, s{sj}, 513
    s_add_u32 s{swo}, s{swo}, s{st}
    s_lshl_b32 s{swo}, s{swo}, 1''')
    for r in range(1,4): e(f's_add_u32 s{swo+r}, s{swo}, {r*128*1026}')
    WR=k.v(8); WI=k.v(8)
    for r in range(4):
        e(f'buffer_load_dwordx2 {vr(WR+2*r,2)}, v{woff}, {sr(swr,4)}, s{swo+r} offen')
        e(f'buffer_load_dwordx2 {vr(WI+2*r,2)}, v{woff}, {sr(swi,4)}, s{swo+r} offen')
    k.stamp()
    fq=k.v(4)
    fn=k.v(); fnj=k.v(); fqj=k.v(4); A=k.v(4); C=k.v(4); Sn=k.v(4)
    e(f'''v_lshlrev_b32 v{t1}, 2, v{g}
    v_cvt_f32_u32 v{fq}, v{t1}
    v_cvt_f32_u32 v{fn}, v{n}
    v_add_u32 v{t0}, s{sj}, v{t0}
    v_cvt_f32_u32 v{fnj}, v{t0}
    v_cvt_f32_u32 v{t0}, s{sj}''')
    for r in range(1,4): e(f'v_add_f32 v{fq+r}, {fhex(r)}, v{fq}')
    e(f's_mov_b32 s{st}, {fhex(8.0)}')
    for r in range(4): e(f'v_fma_f32 v{fqj+r}, v{fq+r}, s{st}, v{t0}')
    def sincos(fx, fy4, scale, Cd, Sd):
        e(f'v_mul_f32 v{t1}, {fhex(scale)}, v{fx}')
        for r in range(4): e(f'v_mul_f32 v{A+r}, v{t1}, v{fy4+r}')
        for r in range(4):
            e(f'v_cos_f32 v{Cd+r}, v{A+r}'); e(f'v_sin_f32 v{Sd+r}, v{A+r}')
    M1re=k.v(4);M1im=k.v(4);M2re=k.v(4);M2im=k.v(4);M3re=k.v(4);M3im=k.v(4);M4re=k.v(4);M4im=k.v(4)
    T1c=k.v(4);T1s=k.v(4);T3c=k.v(4);T3s=k.v(4)
    sincos(fnj,fq,1/128,C,Sn)
    for r in range(4):
        e(f'v_cvt_pk_f16_f32 v{M1re+r}, v{C+r}, v{Sn+r}'); e(f'v_cvt_pk_f16_f32 v{M1im+r}, -v{Sn+r}, v{C+r}')
    sincos(fnj,fq,1/2048,T1c,T1s)
    for r in range(4):
        e(f'v_mul_f32 v{T1c+r}, {fhex(1/16)}, v{T1c+r}'); e(f'v_mul_f32 v{T1s+r}, {fhex(1/16)}, v{T1s+r}')
    sincos(fn,fq,1/16,C,Sn)
    for r in range(4):
        e(f'v_cvt_pk_f16_f32 v{M2re+r}, v{C+r}, v{Sn+r}'); e(f'v_cvt_pk_f16_f32 v{M2im+r}, -v{Sn+r}, v{C+r}')
        e(f'v_cvt_pk_bf16_f32 v{M3re+r}, v{C+r}, -v{Sn+r}'); e(f'v_cvt_pk_bf16_f32 v{M3im+r}, v{Sn+r}, v{C+r}')
    sincos(fn,fqj,1/2048,T3c,T3s)
    for r in range(4):
        e(f'v_mul_f32 v{T3c+r}, {fhex(2.0**-16)}, v{T3c+r}'); e(f'v_mul_f32 v{T3s+r}, {fhex(2.0**-16)}, v{T3s+r}')
    sincos(fn,fqj,1/128,C,Sn)
    for r in range(4):
        e(f'v_cvt_pk_bf16_f32 v{M4re+r}, v{C+r}, -v{Sn+r}'); e(f'v_cvt_pk_bf16_f32 v{M4im+r}, v{Sn+r}, v{C+r}')
    zo=voff; szo=k.s(4,1)
    zo=k.v()
    e(f'''v_lshl_or_b32 v{t0}, v{g}, 6, v{n}
    v_mul_u32_u24 v{zo}, {ZP}, v{t0}
    s_mul_i32 s{szo}, s{sj}, 2112
    s_lshl_b32 s{st}, s{sk0}, 2
    s_add_u32 s{szo}, s{szo}, s{st}
    s_add_u32 s{szo}, s{szo}, {WS_Z}''')
    for r in range(1,4): e(f's_add_u32 s{szo+r}, s{szo}, {r*16*ZP}')
    D=k.v(32); Di=lambda p,c: D+(p*2+c)*4
    tmp=k.v(8); wv=k.v(8)
    k.stamp()
    e('s_waitcnt vmcnt(8)')
    k.stamp()
    for i in range(4):
        for p in range(i+1,4): e(f'v_swap_b32 v{L+4*i+p}, v{L+4*p+i}')
    op=lambda p: L+4*p
    for p in range(4):
        e(f'v_mfma_f32_16x16x32_f16 {vr(Di(p,0),4)}, {vr(op(p),4)}, {vr(M1re,4)}, 0')
        e(f'v_mfma_f32_16x16x32_f16 {vr(Di(p,1),4)}, {vr(op(p),4)}, {vr(M1im,4)}, 0')
    for p in range(4):
        for r in range(4):
            e(f'v_mul_f32 v{tmp+r}, v{Di(p,0)+r}, v{T1c+r}'); e(f'v_mul_f32 v{tmp+4+r}, v{Di(p,1)+r}, v{T1c+r}')
        for r in range(4): e(f'v_fma_mixlo_f16 v{op(p)+r}, v{Di(p,1)+r}, v{T1s+r}, v{tmp+r}')
        for r in range(4): e(f'v_fma_mixhi_f16 v{op(p)+r}, -v{Di(p,0)+r}, v{T1s+r}, v{tmp+4+r}')
        e(f'v_mfma_f32_16x16x32_f16 {vr(Di(p,0),4)}, {vr(M2re,4)}, {vr(op(p),4)}, 0')
        e(f'v_mfma_f32_16x16x32_f16 {vr(Di(p,1),4)}, {vr(M2im,4)}, {vr(op(p),4)}, 0')
    k.stamp()
    e('s_waitcnt vmcnt(0)')
    k.stamp()
    for p in range(4):
        for r in range(4):
            for (dst,src) in ((wv+r,WR),(wv+4+r,WI)):
                if p&1: e(f'v_and_b32 v{dst}, 0xffff0000, v{src+2*r+(p>>1)}')
                else:   e(f'v_lshlrev_b32 v{dst}, 16, v{src+2*r+(p>>1)}')
        for r in range(4):
            e(f'v_mul_f32 v{tmp+r}, v{Di(p,0)+r}, v{wv+r}'); e(f'v_mul_f32 v{tmp+4+r}, v{Di(p,1)+r}, v{wv+r}')
        for r in range(4):
            e(f'v_fma_f32 v{tmp+r}, -v{Di(p,1)+r}, v{wv+4+r}, v{tmp+r}'); e(f'v_fmac_f32 v{tmp+4+r}, v{Di(p,0)+r}, v{wv+4+r}')
        for r in range(4): e(f'v_cvt_pk_bf16_f32 v{op(p)+r}, v{tmp+r}, v{tmp+4+r}')
        e(f'v_mfma_f32_16x16x32_bf16 {vr(Di(p,0),4)}, {vr(op(p),4)}, {vr(M3re,4)}, 0')
        e(f'v_mfma_f32_16x16x32_bf16 {vr(Di(p,1),4)}, {vr(op(p),4)}, {vr(M3im,4)}, 0')
    for p in range(4):
        for r in range(4):
            e(f'v_mul_f32 v{tmp+r}, v{Di(p,0)+r}, v{T3c+r}'); e(f'v_mul_f32 v{tmp+4+r}, v{Di(p,1)+r}, v{T3c+r}')
        for r in range(4):
            e(f'v_fma_f32 v{tmp+r}, -v{Di(p,1)+r}, v{T3s+r}, v{tmp+r}'); e(f'v_fmac_f32 v{tmp+4+r}, v{Di(p,0)+r}, v{T3s+r}')
        for r in range(4): e(f'v_cvt_pk_bf16_f32 v{op(p)+r}, v{tmp+r}, v{tmp+4+r}')
        e(f'v_mfma_f32_16x16x32_bf16 {vr(Di(p,0),4)}, {vr(M4re,4)}, {vr(op(p),4)}, 0')
        e(f'v_mfma_f32_16x16x32_bf16 {vr(Di(p,1),4)}, {vr(M4im,4)}, {vr(op(p),4)}, 0')
    O=WR
    assert WI==WR+8 and WR%2==0
    for p in range(4):
        for r in range(4): e(f'v_cvt_pk_bf16_f32 v{O+4*r+p}, v{Di(p,0)+r}, v{Di(p,1)+r}')
    k.stamp()
    for r in range(4): e(f'buffer_store_dwordx4 {vr(O+4*r,4)}, v{zo}, {sr(sw,4)}, s{szo+r} offen')
    k.finish('K2',sw)
    return k

def k3():
    RP=576
    k=K('fft_rows_inv_kernel',256,512,8*RP*4)
    e=k.e
    e('s_cmp_ge_u32 s2, 256'); e('s_cbranch_scc1 K3_EXIT'); k.stamp_init(2,STAMP)
    sw=srd(k,A_WS,WS_BYTES); sx=srd(k,A_X,4194304); sb=srd(k,A_BWR,2048); so_=srd(k,A_OUT,4194304)
    n=k.v(); g=k.v(); w=k.v(); zoff=k.v(); xoff=k.v(); boff=k.v(); t0=k.v(); t1=k.v(); t2=k.v()
    sz=k.s(); ssoff=k.s(); sw_=k.s()
    e(f'''v_and_b32 v{n}, 15, v0
    v_bfe_u32 v{g}, v0, 4, 2
    v_lshrrev_b32 v{w}, 6, v0
    v_mul_u32_u24 v{t2}, 4224, v{g}
    v_lshl_add_u32 v{zoff}, v{n}, 4, v{t2}
    v_lshl_add_u32 v{zoff}, v{w}, 8, v{zoff}
    s_mul_i32 s{sz}, s2, {ZP}
    s_add_u32 s{sz}, s{sz}, {WS_Z}
    v_lshlrev_b32 v{boff}, 6, v{n}
    v_lshl_or_b32 v{boff}, v{g}, 4, v{boff}
    v_lshl_or_b32 v{xoff}, v{w}, 19, v{boff}
    s_lshl_b32 s{ssoff}, s2, 11
    v_readfirstlane_b32 s{sw_}, v{w}
    s_waitcnt lgkmcnt(0)''')
    L=k.v(8); NL=k.v(2); X=k.v(8); BW=k.v(8)
    e(f'buffer_load_dwordx4 {vr(L,4)}, v{zoff}, {sr(sw,4)}, s{sz} offen')
    e(f'buffer_load_dwordx4 {vr(L+4,4)}, v{zoff}, {sr(sw,4)}, s{sz} offen offset:2112')
    e(f'buffer_load_dword v{NL}, v{t2}, {sr(sw,4)}, s{sz} offen offset:{515*4}')
    e(f'v_add_u32 v{t0}, 2112, v{t2}')
    e(f'buffer_load_dword v{NL+1}, v{t0}, {sr(sw,4)}, s{sz} offen offset:{515*4}')
    e(f'buffer_load_dwordx4 {vr(X,4)}, v{xoff}, {sr(sx,4)}, s{ssoff} offen')
    e(f'buffer_load_dwordx4 {vr(X+4,4)}, v{xoff}, {sr(sx,4)}, s{ssoff} offen offset:1024')
    e(f'buffer_load_dwordx4 {vr(BW,4)}, v{boff}, {sr(sb,4)}, 0 offen')
    e(f'buffer_load_dwordx4 {vr(BW+4,4)}, v{boff}, {sr(sb,4)}, 0 offen offset:1024')
    k.stamp()
    T=k.v(32)
    R8=k.v(2); par=k.v()
    e(f'''v_and_b32 v{par}, 1, v{n}
    v_lshrrev_b32 v{T}, 1, v{n}
    v_mul_u32_u24 v{T+1}, v{T}, v{g}
    v_sub_u32 v{T+1}, v{par}, v{T+1}
    v_lshlrev_b32 v{T+1}, 1, v{T+1}
    v_sub_u32 v{T+2}, v{T+1}, v{T}
    v_cvt_f32_i32 v{T+1}, v{T+1}
    v_cvt_f32_i32 v{T+2}, v{T+2}
    v_mul_f32 v{T+1}, {fhex(1/8)}, v{T+1}
    v_mul_f32 v{T+2}, {fhex(1/8)}, v{T+2}
    v_cos_f32 v{T+3}, v{T+1}
    v_sin_f32 v{T+4}, v{T+1}
    v_cos_f32 v{T+5}, v{T+2}
    v_sin_f32 v{T+6}, v{T+2}
    v_cvt_pk_bf16_f32 v{R8}, v{T+3}, v{T+4}
    v_cvt_pk_bf16_f32 v{R8+1}, v{T+5}, v{T+6}''')
    wa=k.v(); ra=k.v(); nra=k.v(); nwa=k.v()
    e(f'''v_lshrrev_b32 v{T}, 1, v{w}
    v_lshlrev_b32 v{T}, 6, v{T}
    v_lshl_add_u32 v{T}, v{w}, 8, v{T}
    v_lshl_add_u32 v{T}, v{n}, 4, v{T}
    v_mul_u32_u24 v{nwa}, {2*RP*4}, v{g}
    v_add_u32 v{wa}, v{T}, v{nwa}
    v_mul_u32_u24 v{nra}, {RP*4}, v{w}
    v_mul_u32_u24 v{T}, {144*4}, v{g}
    v_lshl_add_u32 v{T}, v{n}, 2, v{T}
    v_add_u32 v{ra}, v{T}, v{nra}''')
    fq=k.v(8); fb=k.v(2); fn=k.v(); sgn=k.v(); nyf=k.v()
    e(f'''v_lshlrev_b32 v{t0}, 2, v{g}
    v_cvt_f32_u32 v{t0}, v{t0}
    v_and_b32 v{t1}, 12, v{n}
    v_add_u32 v{t1}, v{t1}, v{n}
    v_cvt_f32_u32 v{fb}, v{t1}
    v_mul_f32 v{fb}, {fhex(1/32)}, v{fb}
    v_add_f32 v{fb+1}, {fhex(4/32)}, v{fb}
    v_cvt_f32_u32 v{fn}, v{n}
    v_mul_f32 v{fn}, {fhex(1/32)}, v{fn}
    v_mul_u32_u24 v{sgn}, 0x8000, v{par}
    v_lshl_or_b32 v{sgn}, v{sgn}, 16, v{sgn}
    v_lshlrev_b32 v{nyf}, 31, v{par}
    v_or_b32 v{nyf}, 1.0, v{nyf}
    v_cmp_eq_u32 vcc, 0, v{g}
    v_cndmask_b32 v{nyf}, 0, v{nyf}, vcc''')
    for v in range(2):
        for r in range(4): e(f'v_add_f32 v{fq+4*v+r}, {fhex(16*v+r)}, v{t0}')
    IA=k.v(16); IAi=lambda u,c: IA+(u*2+c)*4
    IB=k.v(16); IBi=lambda t,v: IB+(t*2+v)*4
    for u in range(2):
        for r in range(4): e(f'v_mul_f32 v{T+4*u+r}, v{fb+u}, v{fq+r}')
    for r in range(4): e(f'v_mul_f32 v{T+8+r}, v{fn}, v{fq+r}')
    for i in range(12):
        e(f'v_cos_f32 v{T+12+i}, v{T+i}'); e(f'v_sin_f32 v{T+i}, v{T+i}')
    for u in range(2):
        for r in range(4):
            e(f'v_cvt_pk_bf16_f32 v{IAi(u,0)+r}, v{T+12+4*u+r}, -v{T+4*u+r}')
            e(f'v_cvt_pk_bf16_f32 v{IAi(u,1)+r}, v{T+4*u+r}, v{T+12+4*u+r}')
    for r in range(4): e(f'v_cvt_pk_bf16_f32 v{IBi(0,0)+r}, v{T+20+r}, -v{T+8+r}')
    for r in range(4): e(f'v_xor_b32 v{IBi(0,1)+r}, v{IBi(0,0)+r}, v{sgn}')
    for v in range(2):
        for r in range(4):
            if r&1: e(f'v_xor_b32 v{IBi(1,v)+r}, 0x80008000, v{IBi(0,v)+r}')
            else:   e(f'v_mov_b32 v{IBi(1,v)+r}, v{IBi(0,v)+r}')
    TC=k.v(16); TS=k.v(16); ti=lambda u,v,r:(u*2+v)*4+r
    for u in range(2): e(f'v_mul_f32 v{fb+u}, {fhex(1/32)}, v{fb+u}')
    for u in range(2):
        for v in range(2):
            for r in range(4): e(f'v_mul_f32 v{T+ti(u,v,r)}, v{fb+u}, v{fq+4*v+r}')
    for i in range(16):
        e(f'v_cos_f32 v{TC+i}, v{T+i}'); e(f'v_sin_f32 v{TS+i}, v{T+i}')
    B=k.v(8); Dr=T; O=T+20
    k.stamp()
    e('s_waitcnt vmcnt(6)')
    k.stamp()
    for p in range(4):
        e(f'v_mov_b32 v{B+2*p}, v{L+p}'); e(f'v_mov_b32 v{B+2*p+1}, v{L+4+p}')
    for p in range(4): e(f'v_mfma_f32_16x16x16_bf16 {vr(Dr+4*p,4)}, {vr(R8,2)}, {vr(B+2*p,2)}, 0')
    e('s_waitcnt vmcnt(4)')
    e(f'v_mfma_f32_16x16x16_bf16 {vr(Dr+16,4)}, {vr(R8,2)}, {vr(NL,2)}, 0')
    for u in range(2):
        for p in range(4): e(f'v_cvt_pk_bf16_f32 v{O+4*u+p}, v{Dr+4*p+2*u}, v{Dr+4*p+2*u+1}')
        e(f'ds_write_b128 v{wa}, {vr(O+4*u,4)} offset:{u*RP*4}')
    e(f'ds_write_b32 v{nwa}, v{Dr+16} offset:{128*4}')
    e(f'ds_write_b32 v{nwa}, v{Dr+18} offset:{128*4+RP*4}')
    H=k.v(16); Wf=k.v(16)
    e('s_waitcnt vmcnt(0)')
    for (dst,src) in ((H,X),(Wf,BW)):
        for q in range(8):
            e(f'v_lshlrev_b32 v{dst+2*q}, 16, v{src+q}'); e(f'v_and_b32 v{dst+2*q+1}, 0xffff0000, v{src+q}')
    k.stamp()
    e('s_waitcnt lgkmcnt(0)'); e('s_barrier')
    k.stamp()
    opU=B; UN=NL
    for v in range(2):
        e(f'ds_read2_b32 {vr(opU+4*v,2)}, v{ra} offset0:{16*v} offset1:{16*v+32}')
        e(f'ds_read2_b32 {vr(opU+4*v+2,2)}, v{ra} offset0:{16*v+64} offset1:{16*v+96}')
    e(f'ds_read_b32 v{UN}, v{nra} offset:{128*4}')
    Ti=lambda u,v,c: T+((u*2+v)*2+c)*4
    for v in range(2):
        e(f's_waitcnt lgkmcnt({3-2*v})')
        for u in range(2):
            for c in range(2):
                e(f'v_mfma_f32_16x16x32_bf16 {vr(Ti(u,v,c),4)}, {vr(opU+4*v,4)}, {vr(IAi(u,c),4)}, 0')
    e('s_waitcnt lgkmcnt(0)')
    for u in range(2): e(f'v_fmac_f32 v{Ti(u,0,0)}, v{nyf}, v{UN}')
    tmp=k.v(8); opT=k.v(16); oT=lambda u,v: opT+(u*2+v)*4
    Hi=lambda t,u: H+(t*2+u)*4
    for v in range(2):
        for u in range(2):
            for r in range(4):
                e(f'v_mul_f32 v{tmp+r}, v{Ti(u,v,0)+r}, v{TC+ti(u,v,r)}'); e(f'v_mul_f32 v{tmp+4+r}, v{Ti(u,v,1)+r}, v{TC+ti(u,v,r)}')
            for r in range(4):
                e(f'v_fma_f32 v{tmp+r}, -v{Ti(u,v,1)+r}, v{TS+ti(u,v,r)}, v{tmp+r}'); e(f'v_fmac_f32 v{tmp+4+r}, v{Ti(u,v,0)+r}, v{TS+ti(u,v,r)}')
            for r in range(4): e(f'v_cvt_pk_bf16_f32 v{oT(u,v)+r}, v{tmp+r}, v{tmp+4+r}')
            for t in range(2):
                e(f'v_mfma_f32_16x16x32_bf16 {vr(Hi(t,u),4)}, {vr(oT(u,v),4)}, {vr(IBi(t,v),4)}, {vr(Hi(t,u),4)}')
    a0=k.v(); a1=k.v(); a2=k.v(); a3=k.v(); dl=k.v(); mb=k.v()
    smb=k.s(); src=k.s()
    order=[0,1,2,3,8,9,10,11,4,5,6,7,12,13,14,15]
    e(f'v_add_f32 v{a0}, v{H+order[0]}, v{H+order[1]}'); e(f'v_add_f32 v{a1}, v{H+order[2]}, v{H+order[3]}')
    for i in range(4,16): e(f'v_add_f32 v{a0 if i%2==0 else a1}, v{a0 if i%2==0 else a1}, v{H+order[i]}')
    e(f'v_add_f32 v{a0}, v{a0}, v{a1}')
    reduce_sum(k,[a0])
    e(f'v_mul_f32 v{a0}, {fhex(1/1024)}, v{a0}')
    e(f'v_cvt_pk_bf16_f32 v{mb}, v{a0}, v{a0}')
    e(f'v_and_b32 v{mb}, 0xffff0000, v{mb}')
    e(f'v_sub_f32 v{dl}, v{a0}, v{mb}')
    e(f'v_readlane_b32 s{smb}, v{mb}, 63')
    for i in range(16): e(f'v_subrev_f32 v{H+i}, s{smb}, v{H+i}')
    e(f'v_mul_f32 v{a0}, v{H}, v{H}'); e(f'v_mul_f32 v{a1}, v{H+1}, v{H+1}')
    e(f'v_mul_f32 v{a2}, v{H}, v{Wf}'); e(f'v_mul_f32 v{a3}, v{H+1}, v{Wf+1}')
    for i in range(2,16):
        e(f'v_fmac_f32 v{a0 if i%2==0 else a1}, v{H+i}, v{H+i}')
        e(f'v_fmac_f32 v{a2 if i%2==0 else a3}, v{H+i}, v{Wf+i}')
    e(f'v_add_f32 v{a0}, v{a0}, v{a1}'); e(f'v_add_f32 v{a2}, v{a2}, v{a3}')
    reduce_sum(k,[a0,a2])
    e(f'v_mul_f32 v{a0}, {fhex(1/1024)}, v{a0}')
    e(f'v_fma_f32 v{a0}, -v{dl}, v{dl}, v{a0}')
    round_bf16(k,a0)
    e(f'v_add_f32 v{a0}, {fhex(1e-5)}, v{a0}')
    round_bf16(k,a0)
    e(f'v_sqrt_f32 v{a0}, v{a0}')
    round_bf16(k,a0)
    e(f'v_rcp_f32 v{a1}, v{a0}')
    e(f'v_add_f32 v{a3}, 1.0, v{a1}')
    e(f'v_readlane_b32 s{src}, v{a3}, 63')
    vm=tmp
    e(f'v_mov_b32 v{vm}, s{smb}')
    for i in range(16): e(f'v_fma_f32 v{H+i}, v{H+i}, s{src}, v{vm}')
    for t in range(2):
        for q in range(4): e(f'v_cvt_pk_bf16_f32 v{X+4*t+q}, v{H+8*t+2*q}, v{H+8*t+2*q+1}')
        e(f'buffer_store_dwordx4 {vr(X+4*t,4)}, v{xoff}, {sr(so_,4)}, s{ssoff} offen offset:{1024*t}')
    k.stamp()
    srow=k.s(); st=k.s(); ST=k.v(2)
    e(f'''s_lshl_b32 s{srow}, s{sw_}, 8
    s_add_u32 s{srow}, s{srow}, s2
    v_mul_f32 v{a2}, v{a2}, v{a1}
    v_cvt_pk_bf16_f32 v{a2}, v{a2}, v{a2}
    v_ashrrev_i32 v{a3}, 31, v{a2}
    v_or_b32 v{a3}, 0x80000000, v{a3}
    v_xor_b32 v{a2}, v{a2}, v{a3}
    v_and_b32 v{a2}, 0xffff0000, v{a2}
    s_sub_u32 s{st}, 0x87ff, s{srow}
    v_or_b32 v{a2}, s{st}, v{a2}
    v_add_f32 v{a0}, 1.0, v{a0}
    v_rcp_f32 v{ST+1}, v{a0}
    v_mov_b32 v{ST}, v{mb}
    s_lshl_b32 s{st}, s{srow}, 2
    v_mov_b32 v{t0}, s{st}
    v_lshlrev_b32 v{t1}, 1, v{t0}
    s_mov_b32 s{srow}, {WS_KEYS}
    s_mov_b32 s{st}, {WS_STATS}
    s_mov_b32 exec_lo, 0
    s_mov_b32 exec_hi, 0x80000000
    buffer_store_dword v{a2}, v{t0}, {sr(sw,4)}, s{srow} offen
    buffer_store_dwordx2 {vr(ST,2)}, v{t1}, {sr(sw,4)}, s{st} offen''')
    k.finish('K3',sw)
    return k

def wave_max_u32(k, dst, src):
    e=k.e
    first=True
    for ctl in ('quad_perm:[1,0,3,2] row_mask:0xf bank_mask:0xf','quad_perm:[2,3,0,1] row_mask:0xf bank_mask:0xf',
                'row_half_mirror row_mask:0xf bank_mask:0xf','row_mirror row_mask:0xf bank_mask:0xf',
                'row_bcast:15 row_mask:0xa bank_mask:0xf','row_bcast:31 row_mask:0xc bank_mask:0xf'):
        s=src if first else dst
        e(f'v_max_u32_dpp v{dst}, v{s}, v{s} {ctl}'); first=False

def k4():
    k=K('ffn_gateup_kernel',224,512,16384+256)
    e=k.e
    e('s_cmp_ge_u32 s2, 224'); e('s_cbranch_scc1 K4_EXIT'); k.stamp_init(3,STAMP)
    sw=srd(k,A_WS,WS_BYTES); sg=srd(k,A_WG,1024*3584*2); su=srd(k,A_WU,1024*3584*2); so_=srd(k,A_OUT,4194304)
    l=k.v(); lo3=k.v(); kr=k.v(); g=k.v(); w=k.v(); t0=k.v(); t1=k.v(); voff=k.v(); krow=k.v()
    sf0=k.s(); st=k.s(); st2=k.s(); skeys=k.s(); soff=k.s(16,1)
    e(f'''s_and_b32 s{sf0}, s2, 7
    s_mul_i32 s{sf0}, s{sf0}, 28
    s_lshr_b32 s{st}, s2, 3
    s_add_u32 s{sf0}, s{sf0}, s{st}
    s_lshl_b32 s{sf0}, s{sf0}, 5
    v_and_b32 v{l}, 63, v0
    v_and_b32 v{lo3}, 7, v0
    v_bfe_u32 v{kr}, v0, 3, 1
    v_bfe_u32 v{g}, v0, 4, 2
    v_lshrrev_b32 v{w}, 6, v0
    v_lshlrev_b32 v{krow}, 7, v{w}
    v_lshl_or_b32 v{krow}, v{kr}, 5, v{krow}
    v_lshl_or_b32 v{krow}, v{g}, 3, v{krow}
    v_mul_u32_u24 v{voff}, 7168, v{krow}
    v_lshl_add_u32 v{voff}, v{lo3}, 2, v{voff}
    v_lshlrev_b32 v{t0}, 4, v0
    s_mov_b32 s{skeys}, {WS_KEYS}''')
    for ee in range(2):
        for i in range(8): e(f's_add_u32 s{soff+8*ee+i}, s{sf0}, {(64*ee+i)*7168}')
    e('s_waitcnt lgkmcnt(0)')
    Kk=k.v(4); G=k.v(32)
    e(f'buffer_load_dwordx4 {vr(Kk,4)}, v{t0}, {sr(sw,4)}, s{skeys} offen')
    for m,sm in enumerate((sg,su)):
        for i in range(16): e(f'buffer_load_dword v{G+16*m+i}, v{voff}, {sr(sm,4)}, s{soff+i} offen')
    k.stamp()
    e('s_waitcnt vmcnt(32)')
    k.stamp()
    def cx(a,b):
        e(f'v_max_u32 v{t0}, v{a}, v{b}'); e(f'v_min_u32 v{b}, v{a}, v{b}'); e(f'v_mov_b32 v{a}, v{t0}')
    cx(Kk,Kk+1); cx(Kk+2,Kk+3); cx(Kk,Kk+2); cx(Kk+1,Kk+3); cx(Kk+1,Kk+2)
    sel=k.v(); sit=k.s(); sm_=k.s(); sph=k.s(); la=k.v()
    e(f'''v_lshlrev_b32 v{la}, 5, v{w}
    v_lshl_add_u32 v{la}, v{lo3}, 2, v{la}
    s_mov_b32 s{sph}, 0
    K4_PHASE:
    s_mov_b32 s{sit}, 0
    v_mov_b32 v{sel}, 0
    K4_LOOP:
    s_nop 1''')
    wave_max_u32(k,t0,Kk)
    e(f'''v_readlane_b32 s{sm_}, v{t0}, 63
    v_cmp_eq_u32 vcc, s{sit}, v{lo3}
    v_mov_b32 v{t1}, s{sm_}
    v_cndmask_b32 v{sel}, v{sel}, v{t1}, vcc
    v_cmp_eq_u32 vcc, s{sm_}, v{Kk}
    v_cndmask_b32 v{Kk}, v{Kk}, v{Kk+1}, vcc
    v_cndmask_b32 v{Kk+1}, v{Kk+1}, v{Kk+2}, vcc
    v_cndmask_b32 v{Kk+2}, v{Kk+2}, v{Kk+3}, vcc
    v_cndmask_b32 v{Kk+3}, v{Kk+3}, 0, vcc
    s_add_u32 s{sit}, s{sit}, 1
    s_cmp_lt_u32 s{sit}, 8
    s_cbranch_scc1 K4_LOOP
    s_cmp_lg_u32 s{sph}, 0
    s_cbranch_scc1 K4_SELDONE
    ds_write_b32 v{la}, v{sel} offset:16384
    v_lshlrev_b32 v{t0}, 2, v{l}
    s_waitcnt lgkmcnt(0)
    s_barrier
    ds_read_b32 v{Kk}, v{t0} offset:16384
    v_mov_b32 v{Kk+1}, 0
    v_mov_b32 v{Kk+2}, 0
    v_mov_b32 v{Kk+3}, 0
    s_mov_b32 s{sph}, 1
    s_waitcnt lgkmcnt(0)
    s_branch K4_PHASE
    K4_SELDONE:
    s_nop 1''')
    k.stamp()
    row=k.v(); XB=k.v(8); ST=k.v(2)
    e(f'''v_and_b32 v{row}, 0x7ff, v{sel}
    v_sub_u32 v{row}, 0x7ff, v{row}
    v_lshlrev_b32 v{t0}, 11, v{row}
    v_lshl_add_u32 v{t0}, v{krow}, 1, v{t0}
    v_lshlrev_b32 v{t1}, 3, v{row}
    s_mov_b32 s{st}, {WS_STATS}
    buffer_load_dwordx4 {vr(XB,4)}, v{t0}, {sr(so_,4)}, 0 offen
    buffer_load_dwordx4 {vr(XB+4,4)}, v{t0}, {sr(so_,4)}, 0 offen offset:128
    buffer_load_dwordx2 {vr(ST,2)}, v{t1}, {sr(sw,4)}, s{st} offen''')
    e(f'''s_cmp_lg_u32 s2, 0
    s_cbranch_scc1 K4_NOSEL
    v_lshlrev_b32 v{t1}, 2, v{lo3}
    s_mov_b32 s{st}, {WS_SEL}
    buffer_store_dword v{sel}, v{t1}, {sr(sw,4)}, s{st} offen
    s_waitcnt vmcnt(0)
    K4_NOSEL:''')
    OP=k.v(32); opi=lambda m,ee,par: OP+((m*2+ee)*2+par)*4
    sp0=k.s(); sp1=k.s()
    e(f's_mov_b32 s{sp0}, 0x05040100'); e(f's_mov_b32 s{sp1}, 0x07060302')
    e('s_waitcnt vmcnt(3)')
    k.stamp()
    for m in range(2):
        for ee in range(2):
            for par in range(2):
                for q in range(4):
                    b=G+16*m+8*ee+2*q
                    e(f'v_perm_b32 v{opi(m,ee,par)+q}, v{b+1}, v{b}, s{sp1 if par else sp0}')
    e('s_waitcnt vmcnt(0)')
    k.stamp()
    U=G
    e(f'v_mul_f32 v{ST}, v{ST}, v{ST+1}')
    for q in range(8):
        e(f'v_lshlrev_b32 v{U+2*q}, 16, v{XB+q}'); e(f'v_and_b32 v{U+2*q+1}, 0xffff0000, v{XB+q}')
    for i in range(16): e(f'v_fma_f32 v{U+i}, v{U+i}, v{ST+1}, -v{ST}')
    for q in range(8): e(f'v_cvt_pk_bf16_f32 v{XB+q}, v{U+2*q}, v{U+2*q+1}')
    D=G+16; Di=lambda m,par: D+(m*2+par)*4
    for ee in range(2):
        for m in range(2):
            for par in range(2):
                c = '0' if ee==0 else vr(Di(m,par),4)
                e(f'v_mfma_f32_16x16x32_bf16 {vr(Di(m,par),4)}, {vr(opi(m,ee,par),4)}, {vr(XB+4*ee,4)}, {c}')
    e(f'''v_lshl_add_u32 v{t0}, v{w}, 1, v{kr}
    v_lshlrev_b32 v{t0}, 10, v{t0}
    v_lshl_add_u32 v{t0}, v{lo3}, 5, v{t0}
    v_and_b32 v{t1}, 1, v{g}
    v_lshl_add_u32 v{t0}, v{t1}, 4, v{t0}
    v_lshrrev_b32 v{t1}, 1, v{g}
    v_cmp_eq_u32 vcc, v{t1}, v{kr}
    s_mov_b64 exec, vcc''')
    for m in range(2):
        for par in range(2): e(f'ds_write_b128 v{t0}, {vr(Di(m,par),4)} offset:{m*512+par*256}')
    e(f'''s_mov_b64 exec, -1
    v_readfirstlane_b32 s{st}, v{w}
    v_lshlrev_b32 v{t0}, 2, v0
    s_waitcnt lgkmcnt(0)
    s_barrier
    s_cmp_ge_u32 s{st}, 2
    s_cbranch_scc1 K4_END''')
    k.stamp()
    R=OP
    for pi in range(16): e(f'ds_read2st64_b32 {vr(R+2*pi,2)}, v{t0} offset0:{pi*4} offset1:{pi*4+2}')
    e('s_waitcnt lgkmcnt(0)')
    for step in (16,8,4,2):
        for i in range(step): e(f'v_add_f32 v{R+i}, v{R+i}, v{R+step+i}')
    gg=R; uu=R+1; tt=R+2
    round_bf16(k,gg); round_bf16(k,uu)
    e(f'''v_mul_f32 v{tt}, {fhex(-1.4426950408889634)}, v{gg}
    v_exp_f32 v{tt}, v{tt}
    v_add_f32 v{tt}, 1.0, v{tt}
    v_rcp_f32 v{tt}, v{tt}
    v_mul_f32 v{gg}, v{gg}, v{tt}''')
    round_bf16(k,gg)
    e(f'''v_mul_f32 v{gg}, v{gg}, v{uu}
    v_cvt_pk_bf16_f32 v{gg}, v{gg}, v{gg}
    v_bfe_u32 v{t0}, v0, 3, 3
    v_mul_u32_u24 v{t0}, 7168, v{t0}
    v_lshl_add_u32 v{t0}, v{lo3}, 2, v{t0}
    v_lshl_add_u32 v{t0}, v{w}, 1, v{t0}
    s_add_u32 s{st}, s{sf0}, {WS_ACT}
    buffer_store_short v{gg}, v{t0}, {sr(sw,4)}, s{st} offen''')
    k.finish('K4',sw)
    return k

def k5():
    k=K('ffn_down_kernel',224,256,16384)
    e=k.e
    e('s_cmp_ge_u32 s2, 224'); e('s_cbranch_scc1 K5_EXIT'); k.stamp_init(4,STAMP)
    sw=srd(k,A_WS,WS_BYTES); sd=srd(k,A_WD,3584*1024*2)
    lo3=k.v(); kr=k.v(); g=k.v(); w=k.v(); t0=k.v(); t1=k.v(); voff=k.v(); krow=k.v()
    scb=k.s(); sks=k.s(); sbase=k.s(4,1); st=k.s()
    e(f'''s_and_b32 s{scb}, s2, 15
    s_lshr_b32 s{sks}, s2, 4
    v_and_b32 v{lo3}, 7, v0
    v_bfe_u32 v{kr}, v0, 3, 1
    v_bfe_u32 v{g}, v0, 4, 2
    v_lshrrev_b32 v{w}, 6, v0
    v_lshlrev_b32 v{krow}, 6, v{w}
    v_lshl_or_b32 v{krow}, v{kr}, 5, v{krow}
    v_lshl_or_b32 v{krow}, v{g}, 3, v{krow}
    v_lshlrev_b32 v{voff}, 11, v{krow}
    v_lshl_or_b32 v{voff}, v{lo3}, 4, v{voff}
    s_lshl_b32 s{sbase}, s{sks}, 19
    s_lshl_b32 s{st}, s{scb}, 7
    s_add_u32 s{sbase}, s{sbase}, s{st}
    s_add_u32 s{sbase+1}, s{sbase}, 4096
    s_add_u32 s{sbase+2}, s{sbase}, 8192
    s_add_u32 s{sbase+3}, s{sbase}, 12288
    v_mul_u32_u24 v{t0}, 7168, v{lo3}
    v_lshl_add_u32 v{t0}, v{krow}, 1, v{t0}
    s_lshl_b32 s{st}, s{sks}, 9
    s_add_u32 s{st}, s{st}, {WS_ACT}
    s_waitcnt lgkmcnt(0)''')
    L=k.v(32); XB=k.v(4); OP=k.v(32)
    e(f'buffer_load_dwordx4 {vr(XB,4)}, v{t0}, {sr(sw,4)}, s{st} offen')
    for i in range(8): e(f'buffer_load_dwordx4 {vr(L+4*i,4)}, v{voff}, {sr(sd,4)}, s{sbase+(i>>1)} offen offset:{2048*(i&1)}')
    k.stamp()
    sp0=k.s(); sp1=k.s()
    e(f's_mov_b32 s{sp0}, 0x05040100'); e(f's_mov_b32 s{sp1}, 0x07060302')
    for q in range(4):
        e(f's_waitcnt vmcnt({6-2*q})')
        for j in range(8):
            e(f'v_perm_b32 v{OP+4*j+q}, v{L+4*(2*q+1)+(j>>1)}, v{L+4*(2*q)+(j>>1)}, s{sp1 if j&1 else sp0}')
    k.stamp()
    D=L
    for j in range(8): e(f'v_mfma_f32_16x16x32_bf16 {vr(D+4*j,4)}, {vr(OP+4*j,4)}, {vr(XB,4)}, 0')
    e(f'''v_lshl_add_u32 v{t0}, v{w}, 1, v{kr}
    v_lshlrev_b32 v{t0}, 11, v{t0}
    v_lshl_add_u32 v{t0}, v{lo3}, 5, v{t0}
    v_and_b32 v{t1}, 1, v{g}
    v_lshl_add_u32 v{t0}, v{t1}, 4, v{t0}
    v_lshrrev_b32 v{t1}, 1, v{g}
    v_cmp_eq_u32 vcc, v{t1}, v{kr}
    s_mov_b64 exec, vcc''')
    for j in range(8): e(f'ds_write_b128 v{t0}, {vr(D+4*j,4)} offset:{j*256}')
    e(f'''s_mov_b64 exec, -1
    v_and_b32 v{t0}, 63, v0
    v_lshlrev_b32 v{t0}, 2, v{t0}
    v_lshl_add_u32 v{t0}, v{w}, 9, v{t0}
    s_waitcnt lgkmcnt(0)
    s_barrier''')
    k.stamp()
    R=OP
    for pi in range(8): e(f'ds_read2st64_b32 {vr(R+2*pi,2)}, v{t0} offset0:{pi*8} offset1:{pi*8+1}')
    e(f'''v_bfe_u32 v{t1}, v0, 3, 3
    v_lshlrev_b32 v{t1}, 12, v{t1}
    v_lshl_add_u32 v{t1}, v{lo3}, 5, v{t1}
    v_lshl_add_u32 v{t1}, v{w}, 3, v{t1}
    s_lshl_b32 s{st}, s{sks}, 15
    s_lshl_b32 s{scb}, s{scb}, 8
    s_add_u32 s{st}, s{st}, s{scb}
    s_add_u32 s{st}, s{st}, {WS_PART}
    s_waitcnt lgkmcnt(0)''')
    for step in (8,4,2):
        for i in range(step): e(f'v_add_f32 v{R+i}, v{R+i}, v{R+step+i}')
    e(f'buffer_store_dwordx2 {vr(R,2)}, v{t1}, {sr(sw,4)}, s{st} offen')
    k.finish('K5',sw)
    return k

def k6():
    k=K('ffn_final_kernel',64,64,0)
    e=k.e
    e('s_cmp_ge_u32 s2, 64'); e('s_cbranch_scc1 K6_EXIT'); k.stamp_init(5,STAMP)
    sw=srd(k,A_WS,WS_BYTES); so_=srd(k,A_OUT,4194304)
    t0=k.v(); t1=k.v(); key=k.v(); o=k.v(); R=k.v(28); sg=k.v()
    st=k.s(); sp=k.s(14,1); stok=k.s(); sc=k.s()
    e(f'''s_lshr_b32 s{stok}, s2, 3
    s_and_b32 s{sc}, s2, 7
    s_lshl_b32 s{st}, s{stok}, 2
    s_add_u32 s{st}, s{st}, {WS_SEL}
    v_mov_b32 v{t0}, 0
    v_lshlrev_b32 v{t1}, 3, v0
    s_lshl_b32 s{sp}, s2, 9
    s_add_u32 s{sp}, s{sp}, {WS_PART}''')
    for i in range(1,14): e(f's_add_u32 s{sp+i}, s{sp}, {i*32768}')
    e('s_waitcnt lgkmcnt(0)')
    e(f'buffer_load_dword v{key}, v{t0}, {sr(sw,4)}, s{st} offen')
    for i in range(14): e(f'buffer_load_dwordx2 {vr(R+2*i,2)}, v{t1}, {sr(sw,4)}, s{sp+i} offen')
    e(f'''s_waitcnt vmcnt(14)
    v_and_b32 v{t0}, 0x7ff, v{key}
    v_sub_u32 v{t0}, 0x7ff, v{t0}
    v_lshlrev_b32 v{t0}, 11, v{t0}
    v_lshl_add_u32 v{t0}, v0, 2, v{t0}
    s_lshl_b32 s{sc}, s{sc}, 8
    buffer_load_dword v{o}, v{t0}, {sr(so_,4)}, s{sc} offen
    v_ashrrev_i32 v{sg}, 31, v{key}
    v_not_b32 v{sg}, v{sg}
    v_or_b32 v{sg}, 0x80000000, v{sg}
    v_xor_b32 v{sg}, v{sg}, v{key}
    v_and_b32 v{sg}, 0xffff0000, v{sg}
    v_mul_f32 v{sg}, {fhex(-1.4426950408889634)}, v{sg}
    v_exp_f32 v{sg}, v{sg}
    v_add_f32 v{sg}, 1.0, v{sg}
    v_rcp_f32 v{sg}, v{sg}''')
    round_bf16(k,sg)
    e('s_waitcnt vmcnt(1)')
    for i in range(14): e(f'v_add_f32 v{R+i}, v{R+i}, v{R+14+i}')
    for i in range(6): e(f'v_add_f32 v{R+i}, v{R+i}, v{R+8+i}')
    for step in (4,2):
        for i in range(step): e(f'v_add_f32 v{R+i}, v{R+i}, v{R+step+i}')
    for i in range(2):
        round_bf16(k,R+i)
        e(f'v_mul_f32 v{R+i}, v{R+i}, v{sg}')
        round_bf16(k,R+i)
    e(f'''s_waitcnt vmcnt(0)
    v_lshlrev_b32 v{R+2}, 16, v{o}
    v_and_b32 v{R+3}, 0xffff0000, v{o}
    v_add_f32 v{R}, v{R}, v{R+2}
    v_add_f32 v{R+1}, v{R+1}, v{R+3}
    v_cvt_pk_bf16_f32 v{o}, v{R}, v{R+1}
    buffer_store_dword v{o}, v{t0}, {sr(so_,4)}, s{sc} offen''')
    k.finish('K6',sw)
    return k

if __name__=='__main__':
    ks=[k1(),k2(),k3(),k4(),k5(),k6()]
    txt=build(ks)
    open(sys.argv[1],'w').write(txt)
    for k in ks: print(k.name,'vgpr',k.maxv,'sgpr',k.ns,'instr',len(k.L),'nops',k.nnops)
```

```python
import sys
sys.argv.append('--stamps')
from gen import *
def kb3(mode):
    nw = 8 if mode in ('x8',) else 4
    k=K('bench_kernel',256,64*nw,32768); e=k.e
    e('s_cmp_ge_u32 s2, 256'); e('s_cbranch_scc1 KB_EXIT'); k.stamp_init(1,True)
    sw=srd(k,A_WS,WS_BYTES); swr=srd(k,A_WR,2048*513*2); swi=srd(k,A_WI,2048*513*2)
    n=k.v(); g=k.v(); w=k.v(); voff=k.v(); woff=k.v(); t0=k.v(); t1=k.v(); l=k.v()
    sj=k.s(); skb=k.s(); sw_=k.s(); sblk=k.s(); sk0=k.s(); swo=k.s(4,1); st=k.s()
    e(f'''v_lshrrev_b32 v{w}, 6, v0
    v_and_b32 v{n}, 15, v0
    v_and_b32 v{l}, 63, v0
    v_readfirstlane_b32 s{sw_}, v{w}
    v_bfe_u32 v{g}, v0, 4, 2
    s_and_b32 s{sj}, s2, 7
    s_lshr_b32 s{skb}, s2, 3
    s_mul_i32 s{sblk}, s{sj}, 33
    s_add_u32 s{sblk}, s{sblk}, s{skb}
    s_lshl_b32 s{sblk}, s{sblk}, 14''')
    L=k.v(32,4)
    if mode=='xs':
        e(f'''s_lshl_b32 s{st}, s{sw_}, 4
        s_add_u32 s{sblk}, s{sblk}, s{st}
        v_lshlrev_b32 v{voff}, 6, v{n}
        v_lshl_or_b32 v{voff}, v{g}, 12, v{voff}
        s_waitcnt lgkmcnt(0)''')
        k.stamp()
        for i in range(4): e(f'buffer_load_dwordx4 {vr(L+4*i,4)}, v{voff}, {sr(sw,4)}, s{sblk} offen offset:{1024*i}')
    elif mode=='xl':
        e(f'''v_lshlrev_b32 v{voff}, 4, v{l}
        v_lshl_or_b32 v{voff}, v{w}, 12, v{voff}
        s_waitcnt lgkmcnt(0)''')
        k.stamp()
        for i in range(4): e(f'buffer_load_dwordx4 {vr(L+4*i,4)}, v{voff}, {sr(sw,4)}, s{sblk} offen offset:{1024*i}')
    elif mode in ('w32','w32x','w64'):
        lanes = 2 if mode!='w64' else 4
        sh = 1 if lanes==2 else 2
        rows_per=64//lanes
        ninstr=256//rows_per//4
        e(f'''v_lshrrev_b32 v{t0}, {sh}, v{l}
        v_lshl_add_u32 v{t0}, v{w}, 6, v{t0}
        v_mul_u32_u24 v{woff}, 8208, v{t0}
        v_and_b32 v{t0}, {lanes-1}, v{l}
        v_lshl_add_u32 v{woff}, v{t0}, 4, v{woff}
        s_mul_i32 s{swo}, s{sj}, {1026 if lanes==2 else 1024}
        s_lshl_b32 s{st}, s{skb}, 5
        s_add_u32 s{swo}, s{swo}, s{st}''')
        for r in range(1,4): e(f's_add_u32 s{swo+r}, s{swo}, {r*rows_per*8208}')
        e(f'''v_lshlrev_b32 v{voff}, 4, v{l}
        v_lshl_or_b32 v{voff}, v{w}, 12, v{voff}
        s_waitcnt lgkmcnt(0)''')
        k.stamp()
        if mode=='w32x':
            for i in range(4): e(f'buffer_load_dwordx4 {vr(L+16+4*i,4)}, v{voff}, {sr(sw,4)}, s{sblk} offen offset:{1024*i}')
        for i in range(ninstr):
            e(f'buffer_load_dwordx4 {vr(L+8*i,4)}, v{woff}, {sr(swr,4)}, s{swo+i} offen')
            e(f'buffer_load_dwordx4 {vr(L+8*i+4,4)}, v{woff}, {sr(swi,4)}, s{swo+i} offen')
    elif mode in ('st16','st64','st64s'):
        for i in range(4): e(f'v_mov_b32 v{L+i}, 1.0')
        szo=k.s(4,1)
        if mode=='st16':
            e(f'''v_lshl_or_b32 v{t0}, v{g}, 6, v{n}
            v_mul_u32_u24 v{voff}, {ZP}, v{t0}
            v_lshl_add_u32 v{voff}, v{w}, 4, v{voff}''')
            step=16*ZP
        else:
            e(f'''v_lshrrev_b32 v{t0}, 2, v{l}
            v_lshl_add_u32 v{t0}, v{w}, 6, v{t0}
            v_mul_u32_u24 v{voff}, {ZP}, v{t0}
            v_and_b32 v{t0}, 3, v{l}
            v_lshl_add_u32 v{voff}, v{t0}, 4, v{voff}''')
            step=16*ZP
        e(f'''s_mul_i32 s{szo}, s{sj}, 2112
        s_lshl_b32 s{st}, s{skb}, 6
        s_add_u32 s{szo}, s{szo}, s{st}
        s_add_u32 s{szo}, s{szo}, {WS_Z}''')
        for r in range(1,4): e(f's_add_u32 s{szo+r}, s{szo}, {r*step}')
        e('s_waitcnt lgkmcnt(0)')
        k.stamp()
        for r in range(4): e(f'buffer_store_dwordx4 {vr(L,4)}, v{voff}, {sr(sw,4)}, s{szo+r} offen {"sc1" if mode=="st64s" else ""}')
    k.stamp()
    k.finish('KB',sw); return k
def kend():
    k=K('end_kernel',256,64,0); e=k.e
    e('s_cmp_ge_u32 s2, 256'); e('s_cbranch_scc1 KE_EXIT'); k.stamp_init(2,True)
    sw=srd(k,A_WS,WS_BYTES)
    k.finish('KE',sw); return k
for m in ('xs','xl','w32','w32x','w64','st16','st64','st64s'):
    open(f'mb3_{m}.s','w').write(build([k1(),kb3(m),kend()]))
```

```python
import sys,re
from gen_mb3 import *
def wl_addr(k, e, l, w):
    sg=srd(k,A_WG,1024*3584*2); su=srd(k,A_WU,1024*3584*2); sd=srd(k,A_WD,3584*1024*2)
    sfb=k.s(); sq=k.s(); st=k.s(); sgo=k.s(8,1); sdo=k.s(4,1); go=k.v(); do=k.v(); t=k.v(); ssel=k.s(4)
    sw_=k.s()
    e(f'''s_and_b32 s{sfb}, s2, 7
    s_mul_i32 s{sfb}, s{sfb}, 7
    s_lshr_b32 s{st}, s2, 5
    s_add_u32 s{sfb}, s{sfb}, s{st}
    s_bfe_u32 s{sq}, s2, 0x20003
    v_readfirstlane_b32 s{sw_}, v{w}
    v_lshrrev_b32 v{t}, 3, v{l}
    v_lshlrev_b32 v{t}, 3, v{t}
    v_and_b32 v{go}, 3, v{w}
    v_lshl_add_u32 v{t}, v{go}, 6, v{t}
    v_mul_u32_u24 v{go}, 7168, v{t}
    v_and_b32 v{t}, 7, v{l}
    v_lshl_add_u32 v{go}, v{t}, 4, v{go}
    s_mul_i32 s{sgo}, s{sq}, {256*7168}
    s_lshl_b32 s{st}, s{sfb}, 7
    s_add_u32 s{sgo}, s{sgo}, s{st}
    v_lshrrev_b32 v{t}, 5, v{l}
    v_lshl_add_u32 v{t}, v{w}, 3, v{t}
    v_lshlrev_b32 v{do}, 11, v{t}
    v_and_b32 v{t}, 31, v{l}
    v_lshl_add_u32 v{do}, v{t}, 4, v{do}
    s_lshl_b32 s{sdo}, s{sfb}, 17
    s_lshl_b32 s{st}, s{sq}, 9
    s_add_u32 s{sdo}, s{sdo}, s{st}''')
    for i in range(1,8): e(f's_add_u32 s{sgo+i}, s{sgo}, {i*7168}')
    for i in range(1,4): e(f's_add_u32 s{sdo+i}, s{sdo}, {i*4096}')
    def emit(L, flag=''):
        e(f'''s_waitcnt lgkmcnt(0)
        s_cmp_ge_u32 s{sw_}, 4
        s_cselect_b32 s{ssel}, s{su}, s{sg}
        s_cselect_b32 s{ssel+1}, s{su+1}, s{sg+1}
        s_mov_b32 s{ssel+2}, {1024*3584*2}
        s_mov_b32 s{ssel+3}, 0x00020000''')
        for i in range(8): e(f'buffer_load_dwordx4 {vr(L+4*i,4)}, v{go}, {sr(ssel,4)}, s{sgo+i} offen {flag}')
        for i in range(4): e(f'buffer_load_dwordx4 {vr(L+32+4*i,4)}, v{do}, {sr(sd,4)}, s{sdo+i} offen {flag}')
    return emit
def kw(name,idx,flag=''):
    k=K(name,224,512,0); e=k.e
    lab=name[:3].upper()
    e('s_cmp_ge_u32 s2, 224'); e(f's_cbranch_scc1 {lab}_EXIT'); k.stamp_init(idx,True)
    sw=srd(k,A_WS,WS_BYTES)
    l=k.v(); w=k.v(); L=k.v(48,4)
    e(f'v_and_b32 v{l}, 63, v0'); e(f'v_lshrrev_b32 v{w}, 6, v0')
    em=wl_addr(k,e,l,w)
    e('s_waitcnt lgkmcnt(0)'); k.stamp()
    em(L,flag); k.stamp()
    e('s_waitcnt vmcnt(4)'); k.stamp()
    k.finish(lab,sw); return k
def k1pf(where, wait):
    k=k1()
    L0=k.L; k.L=[]
    l=k.v(); w=k.v(); Lr=k.v(48,4)
    k.e(f'v_and_b32 v{l}, 63, v0'); k.e(f'v_lshrrev_b32 v{w}, 6, v0')
    em=wl_addr(k,k.e,l,w); setup=k.L; k.L=[]
    k.e('s_cmp_ge_u32 s2, 224'); k.e('s_cbranch_scc1 K1_NOPF'); em(Lr); k.e('K1_NOPF:'); pf=k.L
    i0=[j for j,x in enumerate(L0) if x.startswith('v_readfirstlane_b32')][0]
    if where=='mid': i1=[j for j,x in enumerate(L0) if x=='s_waitcnt vmcnt(0)'][0]+1
    elif where=='end': i1=[j for j,x in enumerate(L0) if x=='K1_EXIT:'][0]
    k.L=L0[:i0]+setup+L0[i0:i1]+(['s_mov_b64 exec, -1'] if where=='end' else [])+pf+L0[i1:]
    if not wait:
        j=[j for j,x in enumerate(k.L) if x=='K1_END:'][0]
        assert k.L[j+1]=='s_waitcnt vmcnt(0)'
        del k.L[j+1]
    return k
open('mb5_cold.s','w').write(build([k1(),kw('wla_kernel',1),kw('wlb_kernel',2)]))
open('mb5_nt.s','w').write(build([k1(),kw('wla_kernel',1,'nt'),kw('wlb_kernel',2,'nt')]))
open('mb5_mid.s','w').write(build([k1pf('mid',False),kw('wla_kernel',1),kend()]))
open('mb5_end.s','w').write(build([k1pf('end',False),kw('wla_kernel',1),kend()]))
```

```python
import sys, importlib
sys.argv += ['--stamps','--x1f=','--nba=2','--nbi0=2','--nbi1=6']
import gen4 as G
from diag import kdiag
from asmlib import *
import gen
gen.WS_BYTES=0x1400000
import gen_mb5 as M
M.WS_BYTES=0x1400000
def kw256(name,idx,flag):
    k=M.kw(name,idx,flag)
    k.grid=256; k.L[0]='s_cmp_ge_u32 s2, 256'
    return k
open('dg_0.s','w').write(build([kw256('wla_kernel',2,''),G.k1(),G.kp(),kdiag((2,0,'min'),(2,0,'min'),0)]))
open('dg_1.s','w').write(build([kw256('wla_kernel',2,''),G.k1(),G.kp(),kdiag((2,0,'min'),(2,13,'max'),8)]))
open('dg_2.s','w').write(build([kw256('wla_kernel',2,'nt'),G.k1(),G.kp(),kdiag((2,0,'min'),(2,0,'min'),0)]))
open('dg_3.s','w').write(build([kw256('wla_kernel',2,'nt'),G.k1(),G.kp(),kdiag((2,0,'min'),(2,13,'max'),8)]))
open('dg_4.s','w').write(build([G.k1(),G.kp(),kdiag((0,0,'min'),(0,3,'max'),8)]))
G.XNT=''; G.WNT=''
open('dg_5.s','w').write(build([G.k1(),G.kp(),kdiag((0,0,'min'),(0,3,'max'),8)]))
```
